```python
import torch

def _softmax(x, axis=-1):
    return torch.softmax(x, dim=axis)
def _gelu(x):
    return torch.nn.functional.gelu(x, approximate="tanh")
def _silu(x):
    return torch.nn.functional.silu(x)
def _sigmoid(x):
    return torch.sigmoid(x)
def _layernorm(x, axis=-1, eps=1e-5):
    m = x.mean(dim=axis, keepdim=True)
    v = x.var(dim=axis, keepdim=True, unbiased=False)
    return (x - m) / torch.sqrt(v + eps)
def _scatter_add(tgt, idx, src, axis=0):
    return tgt.clone().index_add_(axis, idx, src)
def _segment_sum(src, seg, n):
    out = torch.zeros((n,) + src.shape[1:], dtype=src.dtype)
    return out.index_add_(0, seg, src)
def _pad(x, pw):
    flat = tuple(v for pair in reversed(pw) for v in pair)
    return torch.nn.functional.pad(x, flat)

kernel_name = 'concat_heads__gqa_block_cached__gqa_block_cached__near_ridge'

def setup_inputs():

    _w = (lambda a: (lambda t: t.to(torch.bfloat16) if t.is_floating_point() else t)(torch.as_tensor(a)))
    def _A_setup():
        B, Sq, D = 16, 32, 1024
        Hq, Hkv, Sk, Dh = 32, 4, 32, 128
        assert Hq % Hkv == 0, (Hq, Hkv)
        return {
            "x": _w((lambda *s: torch.randn(*s, dtype=torch.bfloat16) * 0.8)(B, Sq, D)),
            "k_cache": _w((lambda *s: torch.randn(*s, dtype=torch.bfloat16) * 0.8)(B, Hkv, Sk, Dh)),
            "v_cache": _w((lambda *s: torch.randn(*s, dtype=torch.bfloat16) * 0.05)(B, Hkv, Sk, Dh)),
            "wq": _w((lambda *s: torch.randn(*s, dtype=torch.bfloat16) * 0.8)(D, Hq * Dh) * (D ** -0.5)),
            "wo": _w((lambda *s: torch.randn(*s, dtype=torch.bfloat16) * 0.05)(Hq * Dh, D) * ((Hq * Dh) ** -0.5)),
        }
    _A_in = _A_setup()

    def _B_setup():
        B, Sq, D = 16, 32, 1024
        Hq, Hkv, Sk, Dh = 32, 4, 32, 128
        assert Hq % Hkv == 0, (Hq, Hkv)
        return {
            "x": _w((lambda *s: torch.randn(*s, dtype=torch.bfloat16) * 0.8)(B, Sq, D)),
            "k_cache": _w((lambda *s: torch.randn(*s, dtype=torch.bfloat16) * 0.8)(B, Hkv, Sk, Dh)),
            "v_cache": _w((lambda *s: torch.randn(*s, dtype=torch.bfloat16) * 0.05)(B, Hkv, Sk, Dh)),
            "wq": _w((lambda *s: torch.randn(*s, dtype=torch.bfloat16) * 0.8)(D, Hq * Dh) * (D ** -0.5)),
            "wo": _w((lambda *s: torch.randn(*s, dtype=torch.bfloat16) * 0.05)(Hq * Dh, D) * ((Hq * Dh) ** -0.5)),
        }
    _B_in = _B_setup()

    return {
        "A_x": _A_in["x"],
        "A_k_cache": _A_in["k_cache"],
        "A_v_cache": _A_in["v_cache"],
        "A_wq": _A_in["wq"],
        "A_wo": _A_in["wo"],
        "B_x": _B_in["x"],
        "B_k_cache": _B_in["k_cache"],
        "B_v_cache": _B_in["v_cache"],
        "B_wq": _B_in["wq"],
        "B_wo": _B_in["wo"],
    }

def reference(A_x, A_k_cache, A_v_cache, A_wq, A_wo, B_x, B_k_cache, B_v_cache, B_wq, B_wo):
    def _A_ref(x, k_cache, v_cache, wq, wo):
        B, Sq, D = x.shape
        Hq, Dh = 32, 128
        Hkv = k_cache.shape[1]
        rep = Hq // Hkv
        q = (lambda x, *d: x.permute(*d))((x @ wq).reshape(B, Sq, Hq, Dh), 0, 2, 1, 3)
        k = (lambda x, n, axis: torch.repeat_interleave(x, n, dim=axis))(k_cache, rep, axis=1)
        v = (lambda x, n, axis: torch.repeat_interleave(x, n, dim=axis))(v_cache, rep, axis=1)
        scores = torch.einsum("bhqd,bhkd->bhqk", q, k) * (Dh ** -0.5)
        p = _softmax(scores, axis=-1)
        o = torch.einsum("bhqk,bhkd->bhqd", p, v)
        return (lambda x, *d: x.permute(*d))(o, 0, 2, 1, 3).reshape(B, Sq, Hq * Dh) @ wo

    def _B_ref(x, k_cache, v_cache, wq, wo):
        B, Sq, D = x.shape
        Hq, Dh = 32, 128
        Hkv = k_cache.shape[1]
        rep = Hq // Hkv
        q = (lambda x, *d: x.permute(*d))((x @ wq).reshape(B, Sq, Hq, Dh), 0, 2, 1, 3)
        k = (lambda x, n, axis: torch.repeat_interleave(x, n, dim=axis))(k_cache, rep, axis=1)
        v = (lambda x, n, axis: torch.repeat_interleave(x, n, dim=axis))(v_cache, rep, axis=1)
        scores = torch.einsum("bhqd,bhkd->bhqk", q, k) * (Dh ** -0.5)
        p = _softmax(scores, axis=-1)
        o = torch.einsum("bhqk,bhkd->bhqd", p, v)
        return (lambda x, *d: x.permute(*d))(o, 0, 2, 1, 3).reshape(B, Sq, Hq * Dh) @ wo

    a = _A_ref(A_x, A_k_cache, A_v_cache, A_wq, A_wo)
    b = _B_ref(B_x, B_k_cache, B_v_cache, B_wq, B_wo)
    return torch.concatenate([a, b], axis=-1)
```

```python
import sys
NAME = "concat_heads__gqa_block_cached__gqa_block_cached__near_ridge"
class G:
    def __init__(s): s.L = []; s.vm = []
    def A(s, t): s.L.append(t)
    def vmop(s, tag): s.vm.append(tag)
    def vmwait(s, tag):
        idx = max(i for i, t in enumerate(s.vm) if t == tag); n = len(s.vm) - 1 - idx
        assert n <= 63, n
        s.A(f"s_waitcnt vmcnt({n})")
def interleave(g, mf, others, per=None):
    n = len(mf); k = 0
    for i, m in enumerate(mf):
        g.A(m)
        tgt = (len(others) * (i + 1) + n - 1) // n if per is None else min(len(others), per * (i + 1))
        if i == n - 1: tgt = len(others)
        while k < tgt:
            o = others[k]; k += 1
            if callable(o): o()
            else: g.A(o)
def merge(*lists):
    items = []
    for li, l in enumerate(lists):
        for i, x in enumerate(l): items.append(((i + 0.5) / len(l), li, x))
    items.sort(key=lambda t: (t[0], t[1])); return [x for _, _, x in items]
def gen(fn, stamps=False, rotA=1, rotB=1, LAG=3, nt=""):
    g = G(); A = g.A
    def stamp(i):
        if stamps: A(f"s_memrealtime s[{60+2*i}:{61+2*i}]")
    A("; @launch grid=(256,1,1) block=(256,1,1) lds=163840")
    A('.amdgcn_target "amdgcn-amd-amdhsa--gfx950"\n.text\n.globl %s_kernel\n.p2align 8\n.type %s_kernel,@function\n%s_kernel:' % (NAME, NAME, NAME))
    A("s_cmp_ge_u32 s2, 256\ns_cbranch_scc1 L_end")
    stamp(0)
    A("s_and_b32 s3, s2, 7\ns_lshr_b32 s4, s2, 3\ns_lshr_b32 s5, s3, 2\ns_and_b32 s3, s3, 3\ns_mul_i32 s7, s5, 40")
    A("s_load_dwordx2 s[28:29], s[0:1], 80\ns_load_dwordx2 s[32:33], s[0:1], 88\ns_load_dwordx2 s[36:37], s[0:1], 96")
    A("s_add_u32 s0, s0, s7\ns_addc_u32 s1, s1, 0")
    A("s_load_dwordx2 s[8:9], s[0:1], 0\ns_load_dwordx2 s[12:13], s[0:1], 24\ns_load_dwordx2 s[16:17], s[0:1], 32\ns_load_dwordx2 s[20:21], s[0:1], 8\ns_load_dwordx2 s[24:25], s[0:1], 16")
    A("v_lshrrev_b32 v1, 6, v0\nv_and_b32 v0, 63, v0\nv_readfirstlane_b32 s6, v1")
    for r, n in ((8, 0x100000), (12, 0x800000), (16, 0x800000), (20, 0x80000), (24, 0x80000), (28, 0x200000), (32, 256), (36, 0x10000000)):
        A(f"s_mov_b32 s{r+2}, {hex(n)}\ns_mov_b32 s{r+3}, 0x20000")
    X, WQ, WO, KC, VC, OUT, DBG, WS = ["s[%d:%d]" % (r, r + 3) for r in (8, 12, 16, 20, 24, 28, 32, 36)]
    A("s_and_b32 s40, s4, 3\ns_lshr_b32 s44, s4, 2\ns_lshl_b32 s41, s3, 3\ns_add_u32 s41, s41, s44\ns_lshl_b32 s42, s40, 2\ns_add_u32 s42, s42, s6")
    A("s_lshl_b32 s43, s3, 2\ns_add_u32 s43, s43, s40")
    A("v_lshrrev_b32 v1, 3, v0\nv_lshrrev_b32 v6, 4, v0\nv_and_b32 v7, 7, v0\nv_xor_b32 v7, v7, v6\nv_lshlrev_b32 v7, 4, v7\nv_lshl_add_u32 v2, v1, 11, v7")
    A("s_lshl_b32 s7, s42, 16\nv_add_u32 v2, s7, v2\nv_xor_b32 v3, 64, v2\nv_add_u32 v3, 0x4000, v3\nv_add_u32 v4, 0x8000, v2\nv_add_u32 v5, 0x8000, v3")
    A("v_lshlrev_b32 v1, 2, v6\nv_and_b32 v7, 15, v0\nv_xor_b32 v7, v7, v1\nv_lshlrev_b32 v7, 4, v7\nv_lshl_add_u32 v6, v6, 13, v7")
    A("s_lshl_b32 s7, s6, 17\ns_lshl_b32 s45, s41, 8\ns_add_u32 s7, s7, s45\nv_add_u32 v6, s7, v6\nv_add_u32 v7, 0x8000, v6\nv_add_u32 v8, 0x10000, v6\nv_add_u32 v9, 0x18000, v6")
    A("v_lshrrev_b32 v1, 4, v0\nv_and_b32 v10, 15, v0\nv_xor_b32 v10, v10, v1\nv_lshlrev_b32 v10, 4, v10\nv_lshl_add_u32 v10, v1, 8, v10")
    A("v_xor_b32 v11, 64, v10\nv_xor_b32 v12, 128, v10\nv_xor_b32 v13, 192, v10")
    if rotA == 0: A("s_mov_b32 s46, 0")
    elif rotA == 1: A("s_add_u32 s46, s40, s44\ns_and_b32 s46, s46, 1\ns_lshl_b32 s46, s46, 3")
    else: A("s_lshl_b32 s46, s40, 2\ns_lshl_b32 s7, s44, 1\ns_add_u32 s46, s46, s7\ns_and_b32 s46, s46, 15")
    A("s_lshl_b32 s47, s6, 12\ns_lshl_b32 s48, s6, 13")
    A("s_waitcnt lgkmcnt(0)")
    def dma(v, srd, soff, m0expr, tag, extra=""):
        def f():
            A(f"s_add_u32 m0, {m0expr[0]}, {hex(m0expr[1])}")
            A("s_nop 0")
            A(f"buffer_load_dwordx4 {v}, {srd}, {soff} offen lds {extra}"); g.vmop(tag)
        return f
    def chunk_dmas(i):
        s = i & 3
        l = [f"s_lshl_b32 s49, s46, 7\ns_lshl_b32 s50, s46, 19\ns_add_u32 s46, s46, 1\ns_and_b32 s46, s46, 15"]
        for j in range(4):
            l.append(dma(f"v{2+j}", X, "s49", ("s47", s * 32768 + j * 1024), f"c{i}"))
            l.append(dma(f"v{6+j}", WQ, "s50", ("s47", s * 32768 + 16384 + j * 1024), f"c{i}", nt))
        return l
    def tile_dmas(srd, sreg, tag):
        l = []
        for j in range(8):
            l.append(f"s_add_u32 s51, {sreg}, {j*1024}")
            l.append(dma(f"v{10+(j&3)}", srd, "s51", ("s48", 131072 + j * 1024), tag))
        return l
    def run(l):
        for o in l:
            if callable(o): o()
            else: A(o)
    run(chunk_dmas(0)); run(chunk_dmas(1))
    A("s_lshl_b32 s52, s42, 2\ns_add_u32 s52, s52, s3\ns_lshl_b32 s52, s52, 13")
    A("s_lshl_b32 s53, s44, 3\ns_add_u32 s53, s53, s6\ns_lshl_b32 s53, s53, 13\ns_add_u32 s54, s53, 0x8000")
    run(chunk_dmas(2)); run(tile_dmas(KC, "s52", "K")); run(chunk_dmas(3))
    A("v_and_b32 v1, 31, v0\nv_lshrrev_b32 v22, 5, v0\nv_bfe_u32 v14, v0, 1, 3\nv_xor_b32 v14, v14, v22\nv_lshlrev_b32 v14, 4, v14\nv_lshl_add_u32 v14, v1, 7, v14\nv_add_u32 v14, s47, v14")
    A("v_xor_b32 v15, 32, v14\nv_xor_b32 v16, 64, v14\nv_xor_b32 v17, 96, v14")
    A("v_bfe_u32 v23, v0, 2, 2\nv_lshl_add_u32 v18, v22, 3, v23\nv_lshlrev_b32 v18, 8, v18\nv_lshl_add_u32 v18, v23, 6, v18")
    A("v_bfe_u32 v24, v0, 4, 1\nv_lshl_add_u32 v18, v24, 5, v18\nv_and_b32 v25, 1, v0\nv_lshl_add_u32 v18, v25, 4, v18\nv_bfe_u32 v25, v0, 1, 1\nv_lshl_add_u32 v18, v25, 3, v18\nv_add_u32 v18, 0x4000, v18")
    A("v_xor_b32 v19, 64, v18\nv_xor_b32 v20, 128, v18\nv_xor_b32 v21, 192, v18")
    A("v_lshl_add_u32 v26, v22, 3, v23\nv_lshlrev_b32 v26, 7, v26\nv_lshrrev_b32 v25, 1, v23\nv_lshl_add_u32 v26, v25, 6, v26\nv_lshl_add_u32 v26, v24, 5, v26\nv_and_b32 v25, 3, v0\nv_lshl_add_u32 v26, v25, 3, v26\nv_add_u32 v26, s48, v26\nv_xor_b32 v27, 64, v26")
    A("v_and_b32 v25, 15, v0\nv_xor_b32 v25, v25, v22\nv_lshlrev_b32 v25, 4, v25\nv_lshl_add_u32 v28, v1, 8, v25\nv_add_u32 v28, s48, v28\nv_add_u32 v28, 0x20000, v28")
    A("v_lshrrev_b32 v25, 3, v0\nv_lshlrev_b32 v30, 2, v24\nv_and_b32 v29, 7, v0\nv_xor_b32 v30, v30, v29\nv_lshlrev_b32 v30, 4, v30\nv_lshl_add_u32 v30, v25, 11, v30")
    A("s_lshl_b32 s7, s43, 7\ns_lshl_b32 s45, s6, 21\ns_add_u32 s7, s7, s45\nv_add_u32 v30, s7, v30\nv_lshlrev_b32 v31, 4, v0")
    if rotB == 0: A("s_mov_b32 s55, 0")
    elif rotB == 1: A("s_and_b32 s55, s44, 1\ns_lshl_b32 s55, s55, 2")
    elif rotB == 2: A("s_and_b32 s55, s44, 3\ns_lshl_b32 s55, s55, 1")
    else: A("s_mov_b32 s55, s44")
    A("s_lshl_b32 s56, s55, 1")
    def piece_off(u): return (u % 5) * 32768
    def wo_dmas(u):
        l = ["s_lshl_b32 s49, s56, 17\ns_add_u32 s56, s56, 1\ns_and_b32 s56, s56, 15"]
        for j in range(8):
            if j: l.append("s_add_u32 s49, s49, 0x4000")
            l.append(dma("v30", WO, "s49", ("s48", piece_off(u) + j * 1024), f"w{u}", nt))
        return l
    def tile_reads(areg):
        l = []
        for j in range(8):
            l.append(f"v_xor_b32 v29, {32*j}, v28\nds_read_b128 a[{areg+4*j}:{areg+4*j+3}], v29")
        return l
    def chunk_reads(i):
        s = i & 3; b = (i & 1) * 80; l = []
        for ks in range(4):
            r = b + ks * 20
            l.append(f"ds_read_b128 a[{r}:{r+3}], v{14+ks} offset:{s*32768 if s < 2 else (s-2)*32768}" if s < 2 else f"ds_read_b128 a[{r}:{r+3}], v{32+ks} offset:{(s-2)*32768}")
            for blk in range(4):
                for rd in range(2):
                    q = r + 4 + blk * 4 + rd * 2
                    l.append(f"ds_read_b64_tr_b16 a[{q}:{q+1}], v{(18 if s < 2 else 36)+blk} offset:{(s&1)*32768 + (ks*16+rd*4)*256}")
        return l
    for k in range(8): A(f"v_add_u32 v{32+k}, 0x10000, v{14+k}")
    def chunk_mfma(i):
        b = (i & 1) * 80; l = []
        for ks in range(4):
            r = b + ks * 20
            for blk in range(4):
                d = 128 + blk * 16; c = "0" if (i == 0 and ks == 0) else f"v[{d}:{d+15}]"
                l.append(f"v_mfma_f32_32x32x16_bf16 v[{d}:{d+15}], a[{r+4+blk*4}:{r+7+blk*4}], a[{r}:{r+3}], {c}")
        return l
    g.vmwait("c0"); A("s_barrier"); stamp(1); run(chunk_reads(0))
    for i in range(16):
        A("s_waitcnt lgkmcnt(0)")
        ex = []
        if i < 15:
            g.vmwait(f"c{i+1}"); A("s_barrier")
            rd = chunk_reads(i + 1)
        else:
            A("s_barrier"); rd = []
        if i + 4 < 16: dm = chunk_dmas(i + 4)
        else: dm = wo_dmas(i - 12)
        if i == 2: rd = rd + tile_reads(160)
        if i == 3: dm = tile_dmas(VC, "s53", "V0") + dm
        if i == 6: rd = rd + tile_reads(192)
        if i == 7: dm = tile_dmas(VC, "s54", "V1") + dm
        if i == 10: rd = rd + tile_reads(224)
        if i == 15: dm = dm + wo_dmas(4)
        interleave(g, chunk_mfma(i), merge(rd, dm) if rd else dm)
    stamp(2)
    def wo_reads(u):
        b = (u & 1) * 32; l = []; po = piece_off(u)
        for ks in range(4):
            for cb in range(2):
                for rd in range(2):
                    q = b + (ks * 2 + cb) * 4 + rd * 2
                    l.append(f"ds_read_b64_tr_b16 a[{q}:{q+1}], v{[26,14,16][po>>16]+cb} offset:{(po & 65535) + (ks*16+rd*4)*128}")
        return l
    A("v_add_u32 v14, 0x10000, v26\nv_add_u32 v15, 0x10000, v27\nv_add_u32 v16, 0x20000, v26\nv_add_u32 v17, 0x20000, v27")
    A("s_nop 7")
    for k in range(32): A(f"v_cvt_pk_bf16_f32 v{192+k}, v{128+2*k}, v{129+2*k}")
    g.vmwait("w0"); run(wo_reads(0))
    for k in range(8):
        A(f"v_mfma_f32_32x32x16_bf16 v[224:239], a[{160+4*k}:{163+4*k}], v[{192+4*k}:{195+4*k}], " + ("0" if k == 0 else "v[224:239]"))
    A("s_mov_b32 s7, 0x3e0293ee")
    A("s_lshl_b32 s45, s5, 4\ns_add_u32 s45, s45, s42\ns_lshl_b32 s45, s45, 5\ns_add_u32 s45, s45, s41\ns_lshl_b32 s45, s45, 11")
    A("s_nop 7")
    A("v_max3_f32 v240, v224, v225, v226")
    for k in range(227, 239, 2): A(f"v_max3_f32 v240, v240, v{k}, v{k+1}")
    A("v_max_f32 v240, v240, v239\nv_mov_b32 v241, v240\ns_nop 1\nv_permlane32_swap_b32 v240, v241\ns_nop 1\nv_max_f32 v240, v240, v241\nv_mul_f32 v240, s7, v240")
    for k in range(16): A(f"v_fma_f32 v{224+k}, v{224+k}, s7, -v240")
    for k in range(16): A(f"v_exp_f32 v{224+k}, v{224+k}")
    A("v_add_f32 v240, v224, v225\nv_add_f32 v241, v226, v227")
    for k in range(228, 240, 2): A(f"v_add_f32 v240, v240, v{k}\nv_add_f32 v241, v241, v{k+1}")
    A("v_add_f32 v240, v240, v241\nv_mov_b32 v241, v240\ns_nop 1\nv_permlane32_swap_b32 v240, v241\ns_nop 1\nv_add_f32 v240, v240, v241\nv_rcp_f32 v240, v240\ns_nop 0")
    for k in range(16): A(f"v_mul_f32 v{224+k}, v{224+k}, v240")
    for k in range(8): A(f"v_cvt_pk_bf16_f32 v{240+k}, v{224+2*k}, v{225+2*k}")
    A(f"buffer_store_dwordx4 v[240:243], v31, {WS}, s45 offen sc1"); g.vmop("P")
    A(f"buffer_store_dwordx4 v[244:247], v31, {WS}, s45 offen offset:1024 sc1"); g.vmop("P")
    stamp(3)
    A("s_lshl_b32 s57, s5, 2\ns_add_u32 s57, s57, s40\ns_lshl_b32 s57, s57, 2\ns_add_u32 s57, s57, s3\ns_lshl_b32 s57, s57, 3")
    A("s_lshl_b32 s58, s5, 2\ns_lshr_b32 s7, s44, 1\ns_add_u32 s58, s58, s7\ns_lshl_b32 s58, s58, 2\ns_add_u32 s58, s58, s6\ns_lshl_b32 s58, s58, 3")
    A("s_lshl_b32 s59, s5, 3\ns_add_u32 s59, s59, s44\ns_lshl_b32 s59, s59, 3\ns_add_u32 s59, s59, s6\ns_lshl_b32 s59, s59, 14")
    A("v_mov_b32 v1, 0\nv_mov_b32 v2, 1")
    def p_loads(h):
        b = 64 + (h & 3) * 16
        l = ["s_lshl_b32 s50, s55, 11\ns_add_u32 s50, s50, s59\ns_add_u32 s51, s50, 0x10000\ns_add_u32 s55, s55, 1\ns_and_b32 s55, s55, 7"]
        def ld(r, so, off):
            def f():
                A(f"buffer_load_dwordx4 a[{r}:{r+3}], v31, {WS}, {so} offen offset:{off} sc1"); g.vmop(f"p{h}")
            return f
        for bb in range(2):
            for j in range(2): l.append(ld(b + (bb * 2 + j) * 4, "s50" if bb == 0 else "s51", j * 1024))
        return l
    def vw_mfma(u):
        b = (u & 1) * 32; h = u >> 1; l = []
        for ks in range(4):
            kk = (u & 1) * 4 + ks
            for bb in range(2):
                for cb in range(2):
                    d = 128 + (h & 1) * 64 + (bb * 2 + cb) * 16; c = "0" if kk == 0 else f"v[{d}:{d+15}]"
                    va = 192 + bb * 32 + kk * 4; wa = b + (ks * 2 + cb) * 4
                    l.append(f"v_mfma_f32_32x32x16_bf16 v[{d}:{d+15}], a[{va}:{va+3}], a[{wa}:{wa+3}], {c}")
        return l
    def cvts(h):
        return [f"v_cvt_pk_bf16_f32 v{32+(h%3)*32+k}, v{128+(h&1)*64+2*k}, v{129+(h&1)*64+2*k}" for k in range(32)]
    def out_mfma(h):
        l = []
        for j in range(2):
            for bb in range(2):
                for cb in range(2):
                    d = 128 + (bb * 2 + cb) * 16; c = "0" if (h == 0 and j == 0) else f"a[{d}:{d+15}]"
                    w = 32 + (h % 3) * 32 + ((bb * 2 + cb) * 2 + j) * 4; p = 64 + (h & 3) * 16 + (bb * 2 + j) * 4
                    l.append(f"v_mfma_f32_32x32x16_bf16 a[{d}:{d+15}], v[{w}:{w+3}], a[{p}:{p+3}], {c}")
        return l
    outsched = {7: [0], 9: [1], 11: [2], 12: [3], 13: [4], 14: [5], 15: [6]}
    psched = {5: [0, 1], 6: [2], 7: [3], 8: [4], 10: [5], 12: [6], 13: [7]}
    for u in range(16):
        A("s_waitcnt lgkmcnt(0)")
        if u == 1:
            g.vmwait("P"); A("s_barrier\ns_cmp_lg_u32 s6, 0\ns_cbranch_scc1 L_nosig\ns_mov_b64 exec, 1")
            A(f"buffer_atomic_add v2, v1, {DBG}, s57 offen sc1\ns_mov_b64 exec, -1\nL_nosig:")
            stamp(4)
        if u == 4:
            A(f"buffer_load_dword v3, v1, {DBG}, s58 offen sc1"); g.vmop("poll")
        if u == 5:
            g.vmwait("poll"); A("s_mov_b32 s45, 0\nL_poll:\nv_readfirstlane_b32 s7, v3\ns_cmp_ge_u32 s7, 8\ns_cbranch_scc1 L_polled\ns_add_u32 s45, s45, 1\ns_cmp_ge_u32 s45, 0x200000\ns_cbranch_scc1 L_polled\ns_sleep 1")
            A(f"buffer_load_dword v3, v1, {DBG}, s58 offen sc1\ns_waitcnt vmcnt(0)\ns_branch L_poll\nL_polled:")
            stamp(5)
        rd = []
        if u < 15: g.vmwait(f"w{u+1}"); rd = wo_reads(u + 1)
        dm = []
        for h in psched.get(u, []): dm += p_loads(h)
        if u + 5 < 16: dm += wo_dmas(u + 5)
        cv = cvts(u // 2 - 1) if (u >= 2 and u % 2 == 0) else []
        mf = vw_mfma(u)
        if cv:
            o = merge(*[x for x in (rd, dm) if x]); interleave(g, mf[:4], o[:12]); interleave(g, mf[4:], merge(*[x for x in (o[12:], cv) if x]))
        else: interleave(g, mf, merge(*[x for x in (rd, dm) if x]) if (rd or dm) else [])
        for h in outsched.get(u, []):
            g.vmwait(f"p{h}"); run(out_mfma(h))
    A("s_nop 3")
    run(cvts(7)); g.vmwait("p7"); A("s_nop 0"); run(out_mfma(7))
    stamp(6)
    A("s_barrier")
    A("v_and_b32 v1, 31, v0\nv_lshrrev_b32 v22, 5, v0\nv_and_b32 v25, 15, v0\nv_xor_b32 v25, v25, v22\nv_lshlrev_b32 v25, 4, v25\nv_lshl_add_u32 v2, v1, 8, v25\ns_lshl_b32 s7, s6, 14\nv_add_u32 v2, s7, v2")
    for k in range(1, 8): A(f"v_xor_b32 v{2+k}, {32*k}, v2")
    A("s_nop 4")
    for bb in range(2):
        for cb in range(2):
            for a in range(4):
                d = 128 + (bb * 2 + cb) * 16 + a * 4
                A(f"ds_write_b128 v{2+cb*4+a}, a[{d}:{d+3}] offset:{bb*8192}")
    A("v_lshrrev_b32 v10, 3, v0\nv_and_b32 v11, 7, v0\nv_lshlrev_b32 v12, 1, v11\nv_xor_b32 v12, v12, v10\nv_lshlrev_b32 v12, 4, v12\nv_lshl_add_u32 v12, v10, 8, v12\nv_add_u32 v12, s47, v12")
    A("v_xor_b32 v13, 16, v12\nv_xor_b32 v14, 128, v12\nv_add_u32 v14, 0x800, v14\nv_xor_b32 v15, 16, v14")
    A("s_lshl_b32 s7, s44, 2\ns_add_u32 s7, s7, s6\ns_lshl_b32 s7, s7, 16\ns_lshl_b32 s45, s5, 11\ns_add_u32 s7, s7, s45\ns_lshl_b32 s45, s43, 7\ns_add_u32 s7, s7, s45\ns_add_u32 s45, s7, 0x8000")
    A("v_lshlrev_b32 v16, 4, v11\nv_lshl_add_u32 v16, v10, 12, v16")
    A("s_waitcnt lgkmcnt(0)\ns_barrier")
    for e in range(2):
        for p in range(4):
            for hh in range(2):
                r = 32 + e * 32 + p * 8 + hh * 4
                A(f"ds_read_b128 v[{r}:{r+3}], v{12+e*2+hh} offset:{p*16384}")
    for e in range(2):
        A(f"s_waitcnt lgkmcnt({8 if e == 0 else 0})")
        r = 32 + e * 32
        for k in range(8): A(f"v_add_f32 v{r+k}, v{r+k}, v{r+8+k}\nv_add_f32 v{r+16+k}, v{r+16+k}, v{r+24+k}")
        for k in range(8): A(f"v_add_f32 v{r+k}, v{r+k}, v{r+16+k}")
        for k in range(4): A(f"v_cvt_pk_bf16_f32 v{r+8+k}, v{r+2*k}, v{r+2*k+1}")
        A(f"buffer_store_dwordx4 v[{r+8}:{r+11}], v16, {OUT}, {'s7' if e == 0 else 's45'} offen")
    if stamps:
        A("s_waitcnt vmcnt(0)"); stamp(7); A("s_waitcnt lgkmcnt(0)\ns_cmp_lg_u32 s6, 0\ns_cbranch_scc1 L_end\ns_lshl_b32 s3, s2, 7\ns_add_u32 s3, s3, 0x8000000\nv_mov_b32 v1, 0\ns_mov_b64 exec, 1")
        for k in range(4):
            for q in range(4): A(f"v_mov_b32 v{4+q}, s{60+4*k+q}")
            A(f"buffer_store_dwordx4 v[4:7], v1, {WS}, s3 offen offset:{16*k}\ns_nop 1")
    A("L_end:\ns_endpgm")
    A('.section .rodata,"a"\n.p2align 6\n.amdhsa_kernel %s_kernel\n  .amdhsa_next_free_vgpr 512\n  .amdhsa_next_free_sgpr 96\n  .amdhsa_accum_offset 256\n  .amdhsa_group_segment_fixed_size 0\n  .amdhsa_kernarg_size 104\n  .amdhsa_user_sgpr_count 2\n  .amdhsa_user_sgpr_kernarg_segment_ptr 1\n  .amdhsa_system_sgpr_workgroup_id_x 1\n.end_amdhsa_kernel' % NAME)
    open(fn, "w").write("\n".join(g.L) + "\n")
if __name__ == "__main__":
    kw = {}
    for a in sys.argv[2:]:
        k, v = a.split("="); kw[k] = int(v) if v.lstrip("-").isdigit() else v
    gen(sys.argv[1], **kw)
```

```python
import sys
NAME = "concat_heads__gqa_block_cached__gqa_block_cached__near_ridge"
class G:
    def __init__(s): s.L = []; s.vm = []
    def A(s, t): s.L.append(t)
    def vmop(s, tag): s.vm.append(tag)
    def vmwait(s, tag):
        idx = max(i for i, t in enumerate(s.vm) if t == tag); n = len(s.vm) - 1 - idx
        assert n <= 63, n
        s.A(f"s_waitcnt vmcnt({n})")
def interleave(g, mf, others, per=None):
    n = len(mf); k = 0
    for i, m in enumerate(mf):
        g.A(m)
        tgt = (len(others) * (i + 1) + n - 1) // n if per is None else min(len(others), per * (i + 1))
        if i == n - 1: tgt = len(others)
        while k < tgt:
            o = others[k]; k += 1
            if callable(o): o()
            else: g.A(o)
def merge(*lists):
    items = []
    for li, l in enumerate(lists):
        for i, x in enumerate(l): items.append(((i + 0.5) / len(l), li, x))
    items.sort(key=lambda t: (t[0], t[1])); return [x for _, _, x in items]
def gen(fn, stamps=False, rotA=1, rotB=1, LAG=3, nt="", kill="", ntb="", pfA=0, pfB=-1, pfB2=-1):
    g = G(); A = g.A
    def stamp(i):
        if stamps: A(f"s_memrealtime s[{60+2*i}:{61+2*i}]")
    A("; @launch grid=(256,1,1) block=(256,1,1) lds=163840")
    A('.amdgcn_target "amdgcn-amd-amdhsa--gfx950"\n.text\n.globl %s_kernel\n.p2align 8\n.type %s_kernel,@function\n%s_kernel:' % (NAME, NAME, NAME))
    A("s_cmp_ge_u32 s2, 256\ns_cbranch_scc1 L_end")
    stamp(0)
    if stamps: A("s_memtime s[76:77]")
    A("s_and_b32 s3, s2, 7\ns_lshr_b32 s4, s2, 3\ns_lshr_b32 s5, s3, 2\ns_and_b32 s3, s3, 3\ns_mul_i32 s7, s5, 40")
    A("s_load_dwordx2 s[28:29], s[0:1], 80\ns_load_dwordx2 s[32:33], s[0:1], 88\ns_load_dwordx2 s[36:37], s[0:1], 96")
    A("s_add_u32 s0, s0, s7\ns_addc_u32 s1, s1, 0")
    A("s_load_dwordx2 s[8:9], s[0:1], 0\ns_load_dwordx2 s[12:13], s[0:1], 24\ns_load_dwordx2 s[16:17], s[0:1], 32\ns_load_dwordx2 s[20:21], s[0:1], 8\ns_load_dwordx2 s[24:25], s[0:1], 16")
    A("v_lshrrev_b32 v1, 6, v0\nv_and_b32 v0, 63, v0\nv_readfirstlane_b32 s6, v1")
    for r, n in ((8, 0x100000), (12, 0x800000), (16, 0x800000), (20, 0x80000), (24, 0x80000), (28, 0x200000), (32, 256), (36, 0x10000000)):
        A(f"s_mov_b32 s{r+2}, {hex(n)}\ns_mov_b32 s{r+3}, 0x20000")
    X, WQ, WO, KC, VC, OUT, DBG, WS = ["s[%d:%d]" % (r, r + 3) for r in (8, 12, 16, 20, 24, 28, 32, 36)]
    A("s_and_b32 s40, s4, 3\ns_lshr_b32 s44, s4, 2\ns_lshl_b32 s41, s3, 3\ns_add_u32 s41, s41, s44\ns_lshl_b32 s42, s40, 2\ns_add_u32 s42, s42, s6")
    A("s_lshl_b32 s43, s3, 2\ns_add_u32 s43, s43, s40")
    A("v_lshrrev_b32 v1, 3, v0\nv_lshrrev_b32 v6, 4, v0\nv_and_b32 v7, 7, v0\nv_xor_b32 v7, v7, v6\nv_lshlrev_b32 v7, 4, v7\nv_lshl_add_u32 v2, v1, 11, v7")
    A("s_lshl_b32 s7, s42, 16\nv_add_u32 v2, s7, v2\nv_xor_b32 v3, 64, v2\nv_add_u32 v3, 0x4000, v3\nv_add_u32 v4, 0x8000, v2\nv_add_u32 v5, 0x8000, v3")
    A("v_lshlrev_b32 v1, 2, v6\nv_and_b32 v7, 15, v0\nv_xor_b32 v7, v7, v1\nv_lshlrev_b32 v7, 4, v7\nv_lshl_add_u32 v6, v6, 13, v7")
    A("s_lshl_b32 s7, s6, 17\ns_lshl_b32 s45, s41, 8\ns_add_u32 s7, s7, s45\nv_add_u32 v6, s7, v6\nv_add_u32 v7, 0x8000, v6\nv_add_u32 v8, 0x10000, v6\nv_add_u32 v9, 0x18000, v6")
    A("v_lshrrev_b32 v1, 4, v0\nv_and_b32 v10, 15, v0\nv_xor_b32 v10, v10, v1\nv_lshlrev_b32 v10, 4, v10\nv_lshl_add_u32 v10, v1, 8, v10")
    A("v_xor_b32 v11, 64, v10\nv_xor_b32 v12, 128, v10\nv_xor_b32 v13, 192, v10")
    if rotA == 0: A("s_mov_b32 s46, 0")
    elif rotA == 1: A("s_add_u32 s46, s40, s44\ns_and_b32 s46, s46, 1\ns_lshl_b32 s46, s46, 3")
    else: A("s_lshl_b32 s46, s40, 2\ns_lshl_b32 s7, s44, 1\ns_add_u32 s46, s46, s7\ns_and_b32 s46, s46, 15")
    A("s_lshl_b32 s47, s6, 12\ns_lshl_b32 s48, s6, 13")
    A("s_waitcnt lgkmcnt(0)")
    def dma(v, srd, soff, m0expr, tag, extra=""):
        def f():
            A(f"s_add_u32 m0, {m0expr[0]}, {hex(m0expr[1])}")
            A("s_nop 0")
            A(f"buffer_load_dwordx4 {v}, {srd}, {soff} offen {extra} lds"); g.vmop(tag)
        return f
    def chunk_dmas(i):
        s = i & 3
        l = [f"s_lshl_b32 s49, s46, 7\ns_lshl_b32 s50, s46, 19\ns_add_u32 s46, s46, 1\ns_and_b32 s46, s46, 15"]
        for j in range(4):
            l.append(dma(f"v{2+j}", X, "s49", ("s47", s * 32768 + j * 1024), f"c{i}"))
            l.append(dma(f"v{6+j}", WQ, "s50", ("s47", s * 32768 + 16384 + j * 1024), f"c{i}", nt))
        return l
    def tile_dmas(srd, sreg, tag):
        l = []
        for j in range(8):
            l.append(f"s_add_u32 s51, {sreg}, {j*1024}")
            l.append(dma(f"v{10+(j&3)}", srd, "s51", ("s48", 131072 + j * 1024), tag))
        return l
    def run(l):
        for o in l:
            if callable(o): o()
            else: A(o)
    A("s_lshl_b32 s80, s4, 2\ns_add_u32 s80, s80, s6")
    A("v_lshrrev_b32 v40, 4, v0\nv_and_b32 v41, 15, v0\nv_lshlrev_b32 v41, 7, v41\nv_lshl_add_u32 v42, v40, 11, v41\nv_lshl_add_u32 v40, v40, 13, v41")
    A("s_lshl_b32 s81, s80, 15\ns_lshl_b32 s7, s3, 11\ns_add_u32 s81, s81, s7\ns_add_u32 s82, s81, 0x400000\ns_lshl_b32 s83, s80, 13")
    A("v_lshrrev_b32 v43, 4, v0\nv_lshlrev_b32 v43, 21, v43\nv_bfe_u32 v41, v0, 2, 2\nv_lshl_add_u32 v43, v41, 11, v43\nv_and_b32 v41, 3, v0\nv_lshl_add_u32 v43, v41, 7, v43")
    A("s_lshl_b32 s84, s80, 13\ns_lshl_b32 s7, s3, 9\ns_add_u32 s84, s84, s7\ns_add_u32 s85, s84, 0x100000")
    def pf(v, srd, so, d):
        def f():
            A(f"buffer_load_dword v{d}, {v}, {srd}, {so} offen"); g.vmop("pf")
        return f
    PFA = [pf("v42", X, "s83", 44), pf("v40", WQ, "s81", 45), pf("v40", WQ, "s82", 46)]
    PFB = [pf("v43", WO, "s84", 47), pf("v43", WO, "s85", 48)]
    if pfA == 1: run(PFA)
    run(chunk_dmas(0))
    if pfA == 2: run(PFA)
    run(chunk_dmas(1))
    A("s_lshl_b32 s52, s42, 2\ns_add_u32 s52, s52, s3\ns_lshl_b32 s52, s52, 13")
    A("s_lshl_b32 s53, s44, 3\ns_add_u32 s53, s53, s6\ns_lshl_b32 s53, s53, 13\ns_add_u32 s54, s53, 0x8000")
    run(chunk_dmas(2)); run(tile_dmas(KC, "s52", "K")); run(chunk_dmas(3))
    if pfA == 3: run(PFA)
    if pfB == 100: run(PFB)
    A("v_and_b32 v1, 31, v0\nv_lshrrev_b32 v22, 5, v0\nv_bfe_u32 v14, v0, 1, 3\nv_xor_b32 v14, v14, v22\nv_lshlrev_b32 v14, 4, v14\nv_lshl_add_u32 v14, v1, 7, v14\nv_add_u32 v14, s47, v14")
    A("v_xor_b32 v15, 32, v14\nv_xor_b32 v16, 64, v14\nv_xor_b32 v17, 96, v14")
    A("v_bfe_u32 v23, v0, 2, 2\nv_lshl_add_u32 v18, v22, 3, v23\nv_lshlrev_b32 v18, 8, v18\nv_lshl_add_u32 v18, v23, 6, v18")
    A("v_bfe_u32 v24, v0, 4, 1\nv_lshl_add_u32 v18, v24, 5, v18\nv_and_b32 v25, 1, v0\nv_lshl_add_u32 v18, v25, 4, v18\nv_bfe_u32 v25, v0, 1, 1\nv_lshl_add_u32 v18, v25, 3, v18\nv_add_u32 v18, 0x4000, v18")
    A("v_xor_b32 v19, 64, v18\nv_xor_b32 v20, 128, v18\nv_xor_b32 v21, 192, v18")
    A("v_lshl_add_u32 v26, v22, 3, v23\nv_lshlrev_b32 v26, 7, v26\nv_lshrrev_b32 v25, 1, v23\nv_lshl_add_u32 v26, v25, 6, v26\nv_lshl_add_u32 v26, v24, 5, v26\nv_and_b32 v25, 3, v0\nv_lshl_add_u32 v26, v25, 3, v26\nv_add_u32 v26, s48, v26\nv_xor_b32 v27, 64, v26")
    A("v_and_b32 v25, 15, v0\nv_xor_b32 v25, v25, v22\nv_lshlrev_b32 v25, 4, v25\nv_lshl_add_u32 v28, v1, 8, v25\nv_add_u32 v28, s48, v28\nv_add_u32 v28, 0x20000, v28")
    A("v_lshrrev_b32 v25, 3, v0\nv_lshlrev_b32 v30, 2, v24\nv_and_b32 v29, 7, v0\nv_xor_b32 v30, v30, v29\nv_lshlrev_b32 v30, 4, v30\nv_lshl_add_u32 v30, v25, 11, v30")
    A("s_lshl_b32 s7, s43, 7\ns_lshl_b32 s45, s6, 21\ns_add_u32 s7, s7, s45\nv_add_u32 v30, s7, v30\nv_lshlrev_b32 v31, 4, v0")
    if rotB == 0: A("s_mov_b32 s55, 0")
    elif rotB == 1: A("s_and_b32 s55, s44, 1\ns_lshl_b32 s55, s55, 2")
    elif rotB == 2: A("s_and_b32 s55, s44, 3\ns_lshl_b32 s55, s55, 1")
    else: A("s_mov_b32 s55, s44")
    A("s_lshl_b32 s56, s55, 1")
    def piece_off(u): return (u % 5) * 32768
    def wo_dmas(u):
        l = ["s_lshl_b32 s49, s56, 17\ns_add_u32 s56, s56, 1\ns_and_b32 s56, s56, 15"]
        for j in range(8):
            if j: l.append("s_add_u32 s49, s49, 0x4000")
            l.append(dma("v30", WO, "s49", ("s48", piece_off(u) + j * 1024), f"w{u}", ntb))
        return l
    def tile_reads(areg):
        l = []
        for j in range(8):
            l.append(f"v_xor_b32 v29, {32*j}, v28\nds_read_b128 a[{areg+4*j}:{areg+4*j+3}], v29")
        return l
    def chunk_reads(i):
        s = i & 3; b = (i & 1) * 80; l = []
        for ks in range(4):
            r = b + ks * 20
            l.append(f"ds_read_b128 a[{r}:{r+3}], v{14+ks} offset:{s*32768 if s < 2 else (s-2)*32768}" if s < 2 else f"ds_read_b128 a[{r}:{r+3}], v{32+ks} offset:{(s-2)*32768}")
            for blk in range(4):
                for rd in range(2):
                    q = r + 4 + blk * 4 + rd * 2
                    l.append(f"ds_read_b64_tr_b16 a[{q}:{q+1}], v{(18 if s < 2 else 36)+blk} offset:{(s&1)*32768 + (ks*16+rd*4)*256}")
        return l
    for k in range(8): A(f"v_add_u32 v{32+k}, 0x10000, v{14+k}")
    def chunk_mfma(i):
        b = (i & 1) * 80; l = []
        for ks in range(4):
            r = b + ks * 20
            for blk in range(4):
                d = 128 + blk * 16; c = "0" if (i == 0 and ks == 0) else f"v[{d}:{d+15}]"
                l.append(f"v_mfma_f32_32x32x16_bf16 v[{d}:{d+15}], a[{r+4+blk*4}:{r+7+blk*4}], a[{r}:{r+3}], {c}")
        return l
    g.vmwait("c0"); A("s_barrier"); stamp(1); run(chunk_reads(0))
    for i in range(16):
        A("s_waitcnt lgkmcnt(0)")
        ex = []
        if i < 15:
            g.vmwait(f"c{i+1}"); A("s_barrier")
            rd = chunk_reads(i + 1)
        else:
            A("s_barrier"); rd = []
        if i + 4 < 16: dm = chunk_dmas(i + 4)
        else: dm = wo_dmas(i - 12)
        if i == 2: rd = rd + tile_reads(160)
        if i == 3: dm = tile_dmas(VC, "s53", "V0") + dm
        if i == 6: rd = rd + tile_reads(192)
        if i == 7: dm = tile_dmas(VC, "s54", "V1") + dm
        if i == 10: rd = rd + tile_reads(224)
        if i == 15: dm = dm + wo_dmas(4)
        if i == pfB: dm = dm + PFB[:1]
        if i == pfB2: dm = dm + PFB[1:]
        interleave(g, chunk_mfma(i), merge(rd, dm) if rd else dm)
    stamp(2)
    def wo_reads(u):
        b = (u & 1) * 32; l = []; po = piece_off(u)
        for ks in range(4):
            for cb in range(2):
                for rd in range(2):
                    q = b + (ks * 2 + cb) * 4 + rd * 2
                    l.append(f"ds_read_b64_tr_b16 a[{q}:{q+1}], v{[26,14,16][po>>16]+cb} offset:{(po & 65535) + (ks*16+rd*4)*128}")
        return l
    A("v_add_u32 v14, 0x10000, v26\nv_add_u32 v15, 0x10000, v27\nv_add_u32 v16, 0x20000, v26\nv_add_u32 v17, 0x20000, v27")
    A("s_nop 7")
    for k in range(32): A(f"v_cvt_pk_bf16_f32 v{192+k}, v{128+2*k}, v{129+2*k}")
    g.vmwait("w0"); run(wo_reads(0))
    for k in range(8):
        A(f"v_mfma_f32_32x32x16_bf16 v[224:239], a[{160+4*k}:{163+4*k}], v[{192+4*k}:{195+4*k}], " + ("0" if k == 0 else "v[224:239]"))
    A("s_mov_b32 s7, 0x3e0293ee")
    A("s_lshl_b32 s45, s5, 4\ns_add_u32 s45, s45, s42\ns_lshl_b32 s45, s45, 5\ns_add_u32 s45, s45, s41\ns_lshl_b32 s45, s45, 11")
    A("s_nop 7")
    A("v_max3_f32 v240, v224, v225, v226")
    for k in range(227, 239, 2): A(f"v_max3_f32 v240, v240, v{k}, v{k+1}")
    A("v_max_f32 v240, v240, v239\nv_mov_b32 v241, v240\ns_nop 1\nv_permlane32_swap_b32 v240, v241\ns_nop 1\nv_max_f32 v240, v240, v241\nv_mul_f32 v240, s7, v240")
    for k in range(16): A(f"v_fma_f32 v{224+k}, v{224+k}, s7, -v240")
    for k in range(16): A(f"v_exp_f32 v{224+k}, v{224+k}")
    A("v_add_f32 v240, v224, v225\nv_add_f32 v241, v226, v227")
    for k in range(228, 240, 2): A(f"v_add_f32 v240, v240, v{k}\nv_add_f32 v241, v241, v{k+1}")
    A("v_add_f32 v240, v240, v241\nv_mov_b32 v241, v240\ns_nop 1\nv_permlane32_swap_b32 v240, v241\ns_nop 1\nv_add_f32 v240, v240, v241\nv_rcp_f32 v240, v240\ns_nop 0")
    for k in range(16): A(f"v_mul_f32 v{224+k}, v{224+k}, v240")
    for k in range(8): A(f"v_cvt_pk_bf16_f32 v{240+k}, v{224+2*k}, v{225+2*k}")
    A(f"buffer_store_dwordx4 v[240:243], v31, {WS}, s45 offen sc1"); g.vmop("P")
    A(f"buffer_store_dwordx4 v[244:247], v31, {WS}, s45 offen offset:1024 sc1"); g.vmop("P")
    stamp(3)
    A("s_lshl_b32 s57, s5, 2\ns_add_u32 s57, s57, s40\ns_lshl_b32 s57, s57, 2\ns_add_u32 s57, s57, s3\ns_lshl_b32 s57, s57, 3")
    A("s_lshl_b32 s58, s5, 2\ns_lshr_b32 s7, s44, 1\ns_add_u32 s58, s58, s7\ns_lshl_b32 s58, s58, 2\ns_add_u32 s58, s58, s6\ns_lshl_b32 s58, s58, 3")
    A("s_lshl_b32 s59, s5, 3\ns_add_u32 s59, s59, s44\ns_lshl_b32 s59, s59, 3\ns_add_u32 s59, s59, s6\ns_lshl_b32 s59, s59, 14")
    A("v_mov_b32 v1, 0\nv_mov_b32 v2, 1")
    def p_loads(h):
        b = 64 + (h & 3) * 16
        l = ["s_lshl_b32 s50, s55, 11\ns_add_u32 s50, s50, s59\ns_add_u32 s51, s50, 0x10000\ns_add_u32 s55, s55, 1\ns_and_b32 s55, s55, 7"]
        def ld(r, so, off):
            def f():
                A(f"buffer_load_dwordx4 a[{r}:{r+3}], v31, {WS}, {so} offen offset:{off} sc1"); g.vmop(f"p{h}")
            return f
        for bb in range(2):
            for j in range(2): l.append(ld(b + (bb * 2 + j) * 4, "s50" if bb == 0 else "s51", j * 1024))
        return l
    def vw_mfma(u):
        b = (u & 1) * 32; h = u >> 1; l = []
        for ks in range(4):
            kk = (u & 1) * 4 + ks
            for bb in range(2):
                for cb in range(2):
                    d = 128 + (h & 1) * 64 + (bb * 2 + cb) * 16; c = "0" if kk == 0 else f"v[{d}:{d+15}]"
                    va = 192 + bb * 32 + kk * 4; wa = b + (ks * 2 + cb) * 4
                    l.append(f"v_mfma_f32_32x32x16_bf16 v[{d}:{d+15}], a[{va}:{va+3}], a[{wa}:{wa+3}], {c}")
        return l
    def cvts(h):
        return [f"v_cvt_pk_bf16_f32 v{32+(h%3)*32+k}, v{128+(h&1)*64+2*k}, v{129+(h&1)*64+2*k}" for k in range(32)]
    def out_mfma(h):
        l = []
        for j in range(2):
            for bb in range(2):
                for cb in range(2):
                    d = 128 + (bb * 2 + cb) * 16; c = "0" if (h == 0 and j == 0) else f"a[{d}:{d+15}]"
                    w = 32 + (h % 3) * 32 + ((bb * 2 + cb) * 2 + j) * 4; p = 64 + (h & 3) * 16 + (bb * 2 + j) * 4
                    l.append(f"v_mfma_f32_32x32x16_bf16 a[{d}:{d+15}], v[{w}:{w+3}], a[{p}:{p+3}], {c}")
        return l
    outsched = {7: [0], 9: [1], 11: [2], 12: [3], 13: [4], 14: [5], 15: [6]}
    psched = {5: [0, 1], 6: [2], 7: [3], 8: [4], 10: [5], 12: [6], 13: [7]}
    for u in range(16):
        A("s_waitcnt lgkmcnt(0)")
        if u == 1:
            g.vmwait("P"); A("s_barrier\ns_cmp_lg_u32 s6, 0\ns_cbranch_scc1 L_nosig\ns_mov_b64 exec, 1")
            A(f"buffer_atomic_add v2, v1, {DBG}, s57 offen sc1\ns_mov_b64 exec, -1\nL_nosig:")
            stamp(4)
        if u == 4:
            A(f"buffer_load_dword v3, v1, {DBG}, s58 offen sc1"); g.vmop("poll")
        if u == 5:
            g.vmwait("poll"); A("s_mov_b32 s45, 0\nL_poll:\nv_readfirstlane_b32 s7, v3\ns_cmp_ge_u32 s7, 8\ns_cbranch_scc1 L_polled\ns_add_u32 s45, s45, 1\ns_cmp_ge_u32 s45, 0x200000\ns_cbranch_scc1 L_polled\ns_sleep 1")
            A(f"buffer_load_dword v3, v1, {DBG}, s58 offen sc1\ns_waitcnt vmcnt(0)\ns_branch L_poll\nL_polled:")
            stamp(5)
        rd = []
        if u < 15: g.vmwait(f"w{u+1}"); rd = wo_reads(u + 1)
        dm = []
        for h in psched.get(u, []): dm += p_loads(h)
        if u + 5 < 16: dm += wo_dmas(u + 5)
        cv = cvts(u // 2 - 1) if (u >= 2 and u % 2 == 0) else []
        mf = vw_mfma(u)
        if cv:
            o = merge(*[x for x in (rd, dm) if x]); interleave(g, mf[:4], o[:12]); interleave(g, mf[4:], merge(*[x for x in (o[12:], cv) if x]))
        else: interleave(g, mf, merge(*[x for x in (rd, dm) if x]) if (rd or dm) else [])
        for h in outsched.get(u, []):
            g.vmwait(f"p{h}"); run(out_mfma(h))
    A("s_nop 3")
    run(cvts(7)); g.vmwait("p7"); A("s_nop 0"); run(out_mfma(7))
    stamp(6)
    A("s_barrier")
    A("v_and_b32 v1, 31, v0\nv_lshrrev_b32 v22, 5, v0\nv_and_b32 v25, 15, v0\nv_xor_b32 v25, v25, v22\nv_lshlrev_b32 v25, 4, v25\nv_lshl_add_u32 v2, v1, 8, v25\ns_lshl_b32 s7, s6, 14\nv_add_u32 v2, s7, v2")
    for k in range(1, 8): A(f"v_xor_b32 v{2+k}, {32*k}, v2")
    A("s_nop 4")
    for bb in range(2):
        for cb in range(2):
            for a in range(4):
                d = 128 + (bb * 2 + cb) * 16 + a * 4
                A(f"ds_write_b128 v{2+cb*4+a}, a[{d}:{d+3}] offset:{bb*8192}")
    A("v_lshrrev_b32 v10, 3, v0\nv_and_b32 v11, 7, v0\nv_lshlrev_b32 v12, 1, v11\nv_xor_b32 v12, v12, v10\nv_lshlrev_b32 v12, 4, v12\nv_lshl_add_u32 v12, v10, 8, v12\nv_add_u32 v12, s47, v12")
    A("v_xor_b32 v13, 16, v12\nv_xor_b32 v14, 128, v12\nv_add_u32 v14, 0x800, v14\nv_xor_b32 v15, 16, v14")
    A("s_lshl_b32 s7, s44, 2\ns_add_u32 s7, s7, s6\ns_lshl_b32 s7, s7, 16\ns_lshl_b32 s45, s5, 11\ns_add_u32 s7, s7, s45\ns_lshl_b32 s45, s43, 7\ns_add_u32 s7, s7, s45\ns_add_u32 s45, s7, 0x8000")
    A("v_lshlrev_b32 v16, 4, v11\nv_lshl_add_u32 v16, v10, 12, v16")
    A("s_waitcnt lgkmcnt(0)\ns_barrier")
    for e in range(2):
        for p in range(4):
            for hh in range(2):
                r = 32 + e * 32 + p * 8 + hh * 4
                A(f"ds_read_b128 v[{r}:{r+3}], v{12+e*2+hh} offset:{p*16384}")
    for e in range(2):
        A(f"s_waitcnt lgkmcnt({8 if e == 0 else 0})")
        r = 32 + e * 32
        for k in range(8): A(f"v_add_f32 v{r+k}, v{r+k}, v{r+8+k}\nv_add_f32 v{r+16+k}, v{r+16+k}, v{r+24+k}")
        for k in range(8): A(f"v_add_f32 v{r+k}, v{r+k}, v{r+16+k}")
        for k in range(4): A(f"v_cvt_pk_bf16_f32 v{r+8+k}, v{r+2*k}, v{r+2*k+1}")
        A(f"buffer_store_dwordx4 v[{r+8}:{r+11}], v16, {OUT}, {'s7' if e == 0 else 's45'} offen")
    if stamps:
        A("s_waitcnt vmcnt(0)"); stamp(7); A("s_memtime s[78:79]\ns_waitcnt lgkmcnt(0)\ns_sub_u32 s76, s78, s76\ns_sub_u32 s78, s74, s60\ns_mov_b32 s77, 0\ns_mov_b32 s79, 0\ns_cmp_lg_u32 s6, 0\ns_cbranch_scc1 L_end\ns_lshl_b32 s3, s2, 7\ns_add_u32 s3, s3, 0x8000000\nv_mov_b32 v1, 0\ns_mov_b64 exec, 1")
        for k in range(5):
            for q in range(4): A(f"v_mov_b32 v{4+q}, s{60+4*k+q}")
            A(f"buffer_store_dwordx4 v[4:7], v1, {WS}, s3 offen offset:{16*k}\ns_nop 1")
    A("L_end:\ns_endpgm")
    A('.section .rodata,"a"\n.p2align 6\n.amdhsa_kernel %s_kernel\n  .amdhsa_next_free_vgpr 512\n  .amdhsa_next_free_sgpr 96\n  .amdhsa_accum_offset 256\n  .amdhsa_group_segment_fixed_size 0\n  .amdhsa_kernarg_size 104\n  .amdhsa_user_sgpr_count 2\n  .amdhsa_user_sgpr_kernarg_segment_ptr 1\n  .amdhsa_system_sgpr_workgroup_id_x 1\n.end_amdhsa_kernel' % NAME)
    T = "\n".join(g.L).split("\n")
    if "m" in kill: T = [t for t in T if not t.startswith("v_mfma")]
    if "d" in kill: T = [t for t in T if not t.rstrip().endswith("lds") and "lds nt" not in t]
    if "r" in kill: T = [t for t in T if not t.startswith("ds_read_b64_tr") and not t.startswith("ds_read_b128 a")]
    if "b" in kill:
        n = 0; U = []
        for t in T:
            if t == "s_barrier":
                n += 1
                if n <= 17: continue
            U.append(t)
        T = U
    open(fn, "w").write("\n".join(T) + "\n")
if __name__ == "__main__":
    kw = {}
    for a in sys.argv[2:]:
        k, v = a.split("="); kw[k] = int(v) if v.lstrip("-").isdigit() else v
    gen(sys.argv[1], **kw)
```

```python
import sys
NAME = "concat_heads__gqa_block_cached__gqa_block_cached__near_ridge"
class G:
    def __init__(s): s.L = []; s.vm = []
    def A(s, t): s.L.append(t)
    def vmop(s, tag): s.vm.append(tag)
    def vmwait(s, tag):
        idx = max(i for i, t in enumerate(s.vm) if t == tag); n = len(s.vm) - 1 - idx
        assert n <= 63, n
        s.A(f"s_waitcnt vmcnt({n})")
def interleave(g, mf, others, per=None):
    n = len(mf); k = 0
    for i, m in enumerate(mf):
        g.A(m)
        tgt = (len(others) * (i + 1) + n - 1) // n if per is None else min(len(others), per * (i + 1))
        if i == n - 1: tgt = len(others)
        while k < tgt:
            o = others[k]; k += 1
            if callable(o): o()
            else: g.A(o)
def merge(*lists):
    items = []
    for li, l in enumerate(lists):
        for i, x in enumerate(l): items.append(((i + 0.5) / len(l), li, x))
    items.sort(key=lambda t: (t[0], t[1])); return [x for _, _, x in items]
def gen(fn, stamps=False, rotA=1, rotB=1, LAG=3, nt="", kill="", ntb="", pfA=0, pfB=-1, pfB2=-1, stag=0, pfKV=0, badmap=0, c0=0, c1=7, pbar=0, pnt=""):
    g = G(); A = g.A
    def stamp(i):
        if stamps: A(f"s_memrealtime s[{60+2*i}:{61+2*i}]")
        if stamps and i == c0: A("s_memtime s[76:77]")
        if stamps and i == c1: A("s_memtime s[78:79]")
    A("; @launch grid=(256,1,1) block=(256,1,1) lds=163840")
    A('.amdgcn_target "amdgcn-amd-amdhsa--gfx950"\n.text\n.globl %s_kernel\n.p2align 8\n.type %s_kernel,@function\n%s_kernel:' % (NAME, NAME, NAME))
    A("s_cmp_ge_u32 s2, 256\ns_cbranch_scc1 L_end")
    stamp(0)
    A(("s_lshr_b32 s3, s2, 5\ns_and_b32 s4, s2, 31" if badmap else "s_and_b32 s3, s2, 7\ns_lshr_b32 s4, s2, 3") + "\ns_lshr_b32 s5, s3, 2\ns_and_b32 s3, s3, 3\ns_mul_i32 s7, s5, 40")
    A("s_load_dwordx2 s[28:29], s[0:1], 80\ns_load_dwordx2 s[32:33], s[0:1], 88\ns_load_dwordx2 s[36:37], s[0:1], 96")
    A("s_add_u32 s0, s0, s7\ns_addc_u32 s1, s1, 0")
    A("s_load_dwordx2 s[8:9], s[0:1], 0\ns_load_dwordx2 s[12:13], s[0:1], 24\ns_load_dwordx2 s[16:17], s[0:1], 32\ns_load_dwordx2 s[20:21], s[0:1], 8\ns_load_dwordx2 s[24:25], s[0:1], 16")
    A("v_lshrrev_b32 v1, 6, v0\nv_and_b32 v0, 63, v0\nv_readfirstlane_b32 s6, v1")
    for r, n in ((8, 0x100000), (12, 0x800000), (16, 0x800000), (20, 0x80000), (24, 0x80000), (28, 0x200000), (32, 256), (36, 0x10000000)):
        A(f"s_mov_b32 s{r+2}, {hex(n)}\ns_mov_b32 s{r+3}, 0x20000")
    X, WQ, WO, KC, VC, OUT, DBG, WS = ["s[%d:%d]" % (r, r + 3) for r in (8, 12, 16, 20, 24, 28, 32, 36)]
    A("s_and_b32 s40, s4, 3\ns_lshr_b32 s44, s4, 2\ns_lshl_b32 s41, s3, 3\ns_add_u32 s41, s41, s44\ns_lshl_b32 s42, s40, 2\ns_add_u32 s42, s42, s6")
    A("s_lshl_b32 s43, s3, 2\ns_add_u32 s43, s43, s40")
    A("v_lshrrev_b32 v1, 3, v0\nv_lshrrev_b32 v6, 4, v0\nv_and_b32 v7, 7, v0\nv_xor_b32 v7, v7, v6\nv_lshlrev_b32 v7, 4, v7\nv_lshl_add_u32 v2, v1, 11, v7")
    A("s_lshl_b32 s7, s42, 16\nv_add_u32 v2, s7, v2\nv_xor_b32 v3, 64, v2\nv_add_u32 v3, 0x4000, v3\nv_add_u32 v4, 0x8000, v2\nv_add_u32 v5, 0x8000, v3")
    A("v_lshlrev_b32 v1, 2, v6\nv_and_b32 v7, 15, v0\nv_xor_b32 v7, v7, v1\nv_lshlrev_b32 v7, 4, v7\nv_lshl_add_u32 v6, v6, 13, v7")
    A("s_lshl_b32 s7, s6, 17\ns_lshl_b32 s45, s41, 8\ns_add_u32 s7, s7, s45\nv_add_u32 v6, s7, v6\nv_add_u32 v7, 0x8000, v6\nv_add_u32 v8, 0x10000, v6\nv_add_u32 v9, 0x18000, v6")
    A("v_lshrrev_b32 v1, 4, v0\nv_and_b32 v10, 15, v0\nv_xor_b32 v10, v10, v1\nv_lshlrev_b32 v10, 4, v10\nv_lshl_add_u32 v10, v1, 8, v10")
    A("v_xor_b32 v11, 64, v10\nv_xor_b32 v12, 128, v10\nv_xor_b32 v13, 192, v10")
    if rotA == 0: A("s_mov_b32 s46, 0")
    elif rotA == 1: A("s_add_u32 s46, s40, s44\ns_and_b32 s46, s46, 1\ns_lshl_b32 s46, s46, 3")
    elif rotA == 3: A("s_add_u32 s46, s40, s44\ns_and_b32 s46, s46, 3")
    else: A("s_lshl_b32 s46, s40, 2\ns_lshl_b32 s7, s44, 1\ns_add_u32 s46, s46, s7\ns_and_b32 s46, s46, 15")
    A("s_lshl_b32 s47, s6, 12\ns_lshl_b32 s48, s6, 13")
    A("s_memrealtime s[90:91]\ns_waitcnt lgkmcnt(0)\nv_mov_b32 v53, 0")
    A(f"s_or_b32 s7, s2, s6\ns_cmp_lg_u32 s7, 0\ns_cbranch_scc1 L_nonon\ns_or_b32 s90, s90, 1\nv_mov_b32 v54, s90\ns_mov_b64 exec, 1\nbuffer_store_dword v54, v53, {DBG}, 0 offen sc1\ns_mov_b64 exec, -1\nL_nonon:")
    def dma(v, srd, soff, m0expr, tag, extra=""):
        def f():
            A(f"s_add_u32 m0, {m0expr[0]}, {hex(m0expr[1])}")
            A("s_nop 0")
            A(f"buffer_load_dwordx4 {v}, {srd}, {soff} offen {extra} lds"); g.vmop(tag)
        return f
    def chunk_dmas(i):
        s = i & 3
        l = [f"s_lshl_b32 s49, s46, 7\ns_lshl_b32 s50, s46, 19\ns_add_u32 s46, s46, 1\ns_and_b32 s46, s46, 15"]
        if rotA == 3: l = [f"s_or_b32 s50, s46, {i & 12}\ns_lshl_b32 s49, s50, 7\ns_lshl_b32 s50, s50, 19\ns_add_u32 s46, s46, 1\ns_and_b32 s46, s46, 3"]
        for j in range(4):
            l.append(dma(f"v{2+j}", X, "s49", ("s47", s * 32768 + j * 1024), f"c{i}"))
            l.append(dma(f"v{6+j}", WQ, "s50", ("s47", s * 32768 + 16384 + j * 1024), f"c{i}", nt))
        return l
    def tile_dmas(srd, sreg, tag):
        l = []
        for j in range(8):
            l.append(f"s_add_u32 s51, {sreg}, {j*1024}")
            l.append(dma(f"v{10+(j&3)}", srd, "s51", ("s48", 131072 + j * 1024), tag))
        return l
    def run(l):
        for o in l:
            if callable(o): o()
            else: A(o)
    A("s_lshl_b32 s80, s4, 2\ns_add_u32 s80, s80, s6")
    A("v_lshrrev_b32 v40, 4, v0\nv_and_b32 v41, 15, v0\nv_lshlrev_b32 v41, 7, v41\nv_lshl_add_u32 v42, v40, 11, v41\nv_lshl_add_u32 v40, v40, 13, v41")
    A("s_lshl_b32 s81, s80, 15\ns_lshl_b32 s7, s3, 11\ns_add_u32 s81, s81, s7\ns_add_u32 s82, s81, 0x400000\ns_lshl_b32 s83, s80, 13")
    A("v_lshrrev_b32 v43, 4, v0\nv_lshlrev_b32 v43, 21, v43\nv_bfe_u32 v41, v0, 2, 2\nv_lshl_add_u32 v43, v41, 11, v43\nv_and_b32 v41, 3, v0\nv_lshl_add_u32 v43, v41, 7, v43")
    A("s_lshl_b32 s84, s80, 13\ns_lshl_b32 s7, s3, 9\ns_add_u32 s84, s84, s7\ns_add_u32 s85, s84, 0x100000")
    def pf(v, srd, so, d):
        def f():
            A(f"buffer_load_dword v{d}, {v}, {srd}, {so} offen"); g.vmop("pf")
        return f
    PFA = [pf("v42", X, "s83", 44), pf("v40", WQ, "s81", 45), pf("v40", WQ, "s82", 46)]
    PFB = [pf("v43", WO, "s84", 47), pf("v43", WO, "s85", 48)]
    A("v_and_b32 v49, 31, v0\nv_lshlrev_b32 v49, 7, v49\ns_lshl_b32 s86, s80, 12")
    A("v_and_b32 v50, 7, v0\nv_lshlrev_b32 v50, 7, v50\ns_lshr_b32 s87, s80, 3\ns_lshl_b32 s87, s87, 2\ns_add_u32 s87, s87, s3\ns_lshl_b32 s87, s87, 3\ns_and_b32 s7, s80, 7\ns_add_u32 s87, s87, s7\ns_lshl_b32 s87, s87, 10")
    A("s_and_b32 s88, s4, %d" % (stag - 1 if stag else 0))
    lab = [0]
    def cpf(k, slot):
        def f():
            lab[0] += 1
            A(f"s_cmp_lg_u32 s88, {slot}\ns_cbranch_scc1 L_pf{lab[0]}\nbuffer_load_dword v{47+k}, v43, {WO}, s{84+k} offen {pnt}\nL_pf{lab[0]}:")
        return f
    if pfA == 1: run(PFA)
    run(chunk_dmas(0))
    if pbar: A("s_barrier")
    if pfA == 2: run(PFA)
    if pfKV: run([pf("v50", KC, "s87", 51), pf("v49", VC, "s86", 52)])
    run(chunk_dmas(1))
    if pbar: A("s_barrier")
    A("s_lshl_b32 s52, s42, 2\ns_add_u32 s52, s52, s3\ns_lshl_b32 s52, s52, 13")
    A("s_lshl_b32 s53, s44, 3\ns_add_u32 s53, s53, s6\ns_lshl_b32 s53, s53, 13\ns_add_u32 s54, s53, 0x8000")
    run(chunk_dmas(2))
    if pbar: A("s_barrier")
    run(tile_dmas(KC, "s52", "K")); run(chunk_dmas(3))
    A(f"buffer_load_dword v54, v53, {DBG}, 0 offen"); g.vmop("nonce")
    if pfA == 3: run(PFA)
    if pfB == 100: run(PFB)
    A("v_and_b32 v1, 31, v0\nv_lshrrev_b32 v22, 5, v0\nv_bfe_u32 v14, v0, 1, 3\nv_xor_b32 v14, v14, v22\nv_lshlrev_b32 v14, 4, v14\nv_lshl_add_u32 v14, v1, 7, v14\nv_add_u32 v14, s47, v14")
    A("v_xor_b32 v15, 32, v14\nv_xor_b32 v16, 64, v14\nv_xor_b32 v17, 96, v14")
    A("v_bfe_u32 v23, v0, 2, 2\nv_lshl_add_u32 v18, v22, 3, v23\nv_lshlrev_b32 v18, 8, v18\nv_lshl_add_u32 v18, v23, 6, v18")
    A("v_bfe_u32 v24, v0, 4, 1\nv_lshl_add_u32 v18, v24, 5, v18\nv_and_b32 v25, 1, v0\nv_lshl_add_u32 v18, v25, 4, v18\nv_bfe_u32 v25, v0, 1, 1\nv_lshl_add_u32 v18, v25, 3, v18\nv_add_u32 v18, 0x4000, v18")
    A("v_xor_b32 v19, 64, v18\nv_xor_b32 v20, 128, v18\nv_xor_b32 v21, 192, v18")
    A("v_lshl_add_u32 v26, v22, 3, v23\nv_lshlrev_b32 v26, 7, v26\nv_lshrrev_b32 v25, 1, v23\nv_lshl_add_u32 v26, v25, 6, v26\nv_lshl_add_u32 v26, v24, 5, v26\nv_and_b32 v25, 3, v0\nv_lshl_add_u32 v26, v25, 3, v26\nv_add_u32 v26, s48, v26\nv_xor_b32 v27, 64, v26")
    A("v_and_b32 v25, 15, v0\nv_xor_b32 v25, v25, v22\nv_lshlrev_b32 v25, 4, v25\nv_lshl_add_u32 v28, v1, 8, v25\nv_add_u32 v28, s48, v28\nv_add_u32 v28, 0x20000, v28")
    A("v_lshrrev_b32 v25, 3, v0\nv_lshlrev_b32 v30, 2, v24\nv_and_b32 v29, 7, v0\nv_xor_b32 v30, v30, v29\nv_lshlrev_b32 v30, 4, v30\nv_lshl_add_u32 v30, v25, 11, v30")
    A("s_lshl_b32 s7, s43, 7\ns_lshl_b32 s45, s6, 21\ns_add_u32 s7, s7, s45\nv_add_u32 v30, s7, v30\nv_lshlrev_b32 v31, 4, v0")
    if rotB == 0: A("s_mov_b32 s55, 0")
    elif rotB == 1: A("s_and_b32 s55, s44, 1\ns_lshl_b32 s55, s55, 2")
    elif rotB == 2: A("s_and_b32 s55, s44, 3\ns_lshl_b32 s55, s55, 1")
    elif rotB == 4: A("s_lshl_b32 s55, s40, 1")
    elif rotB == 5: A("s_mov_b32 s55, s40")
    else: A("s_mov_b32 s55, s44")
    A("s_lshl_b32 s56, s55, 1")
    def piece_off(u): return (u % 5) * 32768
    def wo_dmas(u):
        l = ["s_lshl_b32 s49, s56, 17\ns_add_u32 s56, s56, 1\ns_and_b32 s56, s56, 15"]
        if rotB == 5: l = [f"s_or_b32 s49, s56, {u & 8}\ns_lshl_b32 s49, s49, 17\ns_add_u32 s56, s56, 1\ns_and_b32 s56, s56, 7"]
        for j in range(8):
            if j: l.append("s_add_u32 s49, s49, 0x4000")
            l.append(dma("v30", WO, "s49", ("s48", piece_off(u) + j * 1024), f"w{u}", ntb))
        return l
    def tile_reads(areg):
        l = []
        for j in range(8):
            l.append(f"v_xor_b32 v29, {32*j}, v28\nds_read_b128 a[{areg+4*j}:{areg+4*j+3}], v29")
        return l
    def chunk_reads(i):
        s = i & 3; b = (i & 1) * 80; l = []
        for ks in range(4):
            r = b + ks * 20
            l.append(f"ds_read_b128 a[{r}:{r+3}], v{14+ks} offset:{s*32768 if s < 2 else (s-2)*32768}" if s < 2 else f"ds_read_b128 a[{r}:{r+3}], v{32+ks} offset:{(s-2)*32768}")
            for blk in range(4):
                for rd in range(2):
                    q = r + 4 + blk * 4 + rd * 2
                    l.append(f"ds_read_b64_tr_b16 a[{q}:{q+1}], v{(18 if s < 2 else 36)+blk} offset:{(s&1)*32768 + (ks*16+rd*4)*256}")
        return l
    for k in range(8): A(f"v_add_u32 v{32+k}, 0x10000, v{14+k}")
    def chunk_mfma(i):
        b = (i & 1) * 80; l = []
        for ks in range(4):
            r = b + ks * 20
            for blk in range(4):
                d = 128 + blk * 16; c = "0" if (i == 0 and ks == 0) else f"v[{d}:{d+15}]"
                l.append(f"v_mfma_f32_32x32x16_bf16 v[{d}:{d+15}], a[{r+4+blk*4}:{r+7+blk*4}], a[{r}:{r+3}], {c}")
        return l
    g.vmwait("c0"); A("s_barrier"); stamp(1); run(chunk_reads(0))
    for i in range(16):
        A("s_waitcnt lgkmcnt(0)")
        if i == 4:
            A(f"s_mov_b32 s45, 0\nL_nonce:\nv_readfirstlane_b32 s90, v54\ns_cmp_lg_u32 s90, 0\ns_cbranch_scc1 L_nonced\ns_add_u32 s45, s45, 1\ns_cmp_ge_u32 s45, 0x200000\ns_cbranch_scc1 L_nonced\ns_sleep 2\nbuffer_load_dword v54, v53, {DBG}, 0 offen sc1\ns_waitcnt vmcnt(0)\ns_branch L_nonce\nL_nonced:")
        if i < 15:
            g.vmwait(f"c{i+1}"); A("s_barrier")
            rd = chunk_reads(i + 1)
        else:
            A("s_barrier"); rd = []
        if i + 4 < 16: dm = chunk_dmas(i + 4)
        else: dm = wo_dmas(i - 12)
        if i == 2: rd = rd + tile_reads(160)
        if i == 3: dm = tile_dmas(VC, "s53", "V0") + dm
        if i == 6: rd = rd + tile_reads(192)
        if i == 7: dm = tile_dmas(VC, "s54", "V1") + dm
        if i == 10: rd = rd + tile_reads(224)
        if i == 15: dm = dm + wo_dmas(4)
        if stag:
            if pfB <= i < pfB + stag: dm = dm + [cpf(0, i - pfB)]
            if pfB2 <= i < pfB2 + stag: dm = dm + [cpf(1, i - pfB2)]
        else:
            if i == pfB: dm = dm + PFB[:1]
            if i == pfB2: dm = dm + PFB[1:]
        interleave(g, chunk_mfma(i), merge(rd, dm) if rd else dm)
    stamp(2)
    def wo_reads(u):
        b = (u & 1) * 32; l = []; po = piece_off(u)
        for ks in range(4):
            for cb in range(2):
                for rd in range(2):
                    q = b + (ks * 2 + cb) * 4 + rd * 2
                    l.append(f"ds_read_b64_tr_b16 a[{q}:{q+1}], v{[26,14,16][po>>16]+cb} offset:{(po & 65535) + (ks*16+rd*4)*128}")
        return l
    A("v_add_u32 v14, 0x10000, v26\nv_add_u32 v15, 0x10000, v27\nv_add_u32 v16, 0x20000, v26\nv_add_u32 v17, 0x20000, v27")
    A("s_nop 7")
    for k in range(32): A(f"v_cvt_pk_bf16_f32 v{192+k}, v{128+2*k}, v{129+2*k}")
    g.vmwait("w0"); run(wo_reads(0))
    for k in range(8):
        A(f"v_mfma_f32_32x32x16_bf16 v[224:239], a[{160+4*k}:{163+4*k}], v[{192+4*k}:{195+4*k}], " + ("0" if k == 0 else "v[224:239]"))
    A("s_mov_b32 s7, 0x3e0293ee")
    A("s_lshl_b32 s45, s5, 4\ns_add_u32 s45, s45, s42\ns_lshl_b32 s45, s45, 5\ns_add_u32 s45, s45, s41\ns_lshl_b32 s45, s45, 11")
    A("s_nop 7")
    A("v_max3_f32 v240, v224, v225, v226")
    for k in range(227, 239, 2): A(f"v_max3_f32 v240, v240, v{k}, v{k+1}")
    A("v_max_f32 v240, v240, v239\nv_mov_b32 v241, v240\ns_nop 1\nv_permlane32_swap_b32 v240, v241\ns_nop 1\nv_max_f32 v240, v240, v241\nv_mul_f32 v240, s7, v240")
    for k in range(16): A(f"v_fma_f32 v{224+k}, v{224+k}, s7, -v240")
    for k in range(16): A(f"v_exp_f32 v{224+k}, v{224+k}")
    A("v_add_f32 v240, v224, v225\nv_add_f32 v241, v226, v227")
    for k in range(228, 240, 2): A(f"v_add_f32 v240, v240, v{k}\nv_add_f32 v241, v241, v{k+1}")
    A("v_add_f32 v240, v240, v241\nv_mov_b32 v241, v240\ns_nop 1\nv_permlane32_swap_b32 v240, v241\ns_nop 1\nv_add_f32 v240, v240, v241\nv_rcp_f32 v240, v240\ns_nop 0")
    for k in range(16): A(f"v_mul_f32 v{224+k}, v{224+k}, v240")
    for k in range(8): A(f"v_cvt_pk_bf16_f32 v{240+k}, v{224+2*k}, v{225+2*k}")
    A(f"buffer_store_dwordx4 v[240:243], v31, {WS}, s45 offen sc1"); g.vmop("P")
    A(f"buffer_store_dwordx4 v[244:247], v31, {WS}, s45 offen offset:1024 sc1"); g.vmop("P")
    stamp(3)
    A("s_lshl_b32 s57, s5, 2\ns_add_u32 s57, s57, s40\ns_lshl_b32 s57, s57, 2\ns_add_u32 s57, s57, s3\ns_lshl_b32 s57, s57, 6\ns_add_u32 s57, s57, s44\ns_lshl_b32 s57, s57, 2\ns_add_u32 s57, s57, 0x400000")
    A("s_lshl_b32 s58, s5, 2\ns_lshr_b32 s7, s44, 1\ns_add_u32 s58, s58, s7\ns_lshl_b32 s58, s58, 2\ns_add_u32 s58, s58, s6\ns_lshl_b32 s58, s58, 8\ns_add_u32 s58, s58, 0x400000")
    A("s_lshl_b32 s59, s5, 3\ns_add_u32 s59, s59, s44\ns_lshl_b32 s59, s59, 3\ns_add_u32 s59, s59, s6\ns_lshl_b32 s59, s59, 14")
    A("v_mov_b32 v1, 0\nv_mov_b32 v2, s90\nv_and_b32 v4, 7, v0\nv_lshlrev_b32 v4, 2, v4")
    def p_loads(h):
        b = 64 + (h & 3) * 16
        l = ["s_lshl_b32 s50, s55, 11\ns_add_u32 s50, s50, s59\ns_add_u32 s51, s50, 0x10000\ns_add_u32 s55, s55, 1\ns_and_b32 s55, s55, 7"]
        if rotB == 5: l = [f"s_or_b32 s50, s55, {h & 4}\ns_lshl_b32 s50, s50, 11\ns_add_u32 s50, s50, s59\ns_add_u32 s51, s50, 0x10000\ns_add_u32 s55, s55, 1\ns_and_b32 s55, s55, 3"]
        def ld(r, so, off):
            def f():
                A(f"buffer_load_dwordx4 a[{r}:{r+3}], v31, {WS}, {so} offen offset:{off} sc1"); g.vmop(f"p{h}")
            return f
        for bb in range(2):
            for j in range(2): l.append(ld(b + (bb * 2 + j) * 4, "s50" if bb == 0 else "s51", j * 1024))
        return l
    def vw_mfma(u):
        b = (u & 1) * 32; h = u >> 1; l = []
        for ks in range(4):
            kk = (u & 1) * 4 + ks
            for bb in range(2):
                for cb in range(2):
                    d = 128 + (h & 1) * 64 + (bb * 2 + cb) * 16; c = "0" if kk == 0 else f"v[{d}:{d+15}]"
                    va = 192 + bb * 32 + kk * 4; wa = b + (ks * 2 + cb) * 4
                    l.append(f"v_mfma_f32_32x32x16_bf16 v[{d}:{d+15}], a[{va}:{va+3}], a[{wa}:{wa+3}], {c}")
        return l
    def cvts(h):
        return [f"v_cvt_pk_bf16_f32 v{32+(h%3)*32+k}, v{128+(h&1)*64+2*k}, v{129+(h&1)*64+2*k}" for k in range(32)]
    def out_mfma(h):
        l = []
        for j in range(2):
            for bb in range(2):
                for cb in range(2):
                    d = 128 + (bb * 2 + cb) * 16; c = "0" if (h == 0 and j == 0) else f"a[{d}:{d+15}]"
                    w = 32 + (h % 3) * 32 + ((bb * 2 + cb) * 2 + j) * 4; p = 64 + (h & 3) * 16 + (bb * 2 + j) * 4
                    l.append(f"v_mfma_f32_32x32x16_bf16 a[{d}:{d+15}], v[{w}:{w+3}], a[{p}:{p+3}], {c}")
        return l
    outsched = {7: [0], 9: [1], 11: [2], 12: [3], 13: [4], 14: [5], 15: [6]}
    psched = {5: [0, 1], 6: [2], 7: [3], 8: [4], 10: [5], 12: [6], 13: [7]}
    for u in range(16):
        A("s_waitcnt lgkmcnt(0)")
        if u == 1:
            g.vmwait("P"); A("s_barrier\ns_cmp_lg_u32 s6, 0\ns_cbranch_scc1 L_nosig\ns_mov_b64 exec, 1")
            A(f"buffer_store_dword v2, v1, {WS}, s57 offen sc1\ns_mov_b64 exec, -1\nL_nosig:")
            stamp(4)
        if u == 4:
            A(f"buffer_load_dword v3, v4, {WS}, s58 offen sc1"); g.vmop("poll")
        if u == 5:
            g.vmwait("poll"); A("s_mov_b32 s45, 0\nL_poll:\nv_cmp_ne_u32 vcc, v2, v3\ns_nop 4\ns_cbranch_vccz L_polled\ns_add_u32 s45, s45, 1\ns_cmp_ge_u32 s45, 0x200000\ns_cbranch_scc1 L_polled\ns_sleep 1")
            A(f"buffer_load_dword v3, v4, {WS}, s58 offen sc1\ns_waitcnt vmcnt(0)\ns_branch L_poll\nL_polled:")
            stamp(5)
        rd = []
        if u < 15: g.vmwait(f"w{u+1}"); rd = wo_reads(u + 1)
        dm = []
        for h in psched.get(u, []): dm += p_loads(h)
        if u + 5 < 16: dm += wo_dmas(u + 5)
        cv = cvts(u // 2 - 1) if (u >= 2 and u % 2 == 0) else []
        mf = vw_mfma(u)
        if cv:
            o = merge(*[x for x in (rd, dm) if x]); interleave(g, mf[:4], o[:12]); interleave(g, mf[4:], merge(*[x for x in (o[12:], cv) if x]))
        else: interleave(g, mf, merge(*[x for x in (rd, dm) if x]) if (rd or dm) else [])
        for h in outsched.get(u, []):
            g.vmwait(f"p{h}"); run(out_mfma(h))
    A("s_nop 3")
    run(cvts(7)); g.vmwait("p7"); A("s_nop 0"); run(out_mfma(7))
    stamp(6)
    A("s_barrier")
    A("v_and_b32 v1, 31, v0\nv_lshrrev_b32 v22, 5, v0\nv_and_b32 v25, 15, v0\nv_xor_b32 v25, v25, v22\nv_lshlrev_b32 v25, 4, v25\nv_lshl_add_u32 v2, v1, 8, v25\ns_lshl_b32 s7, s6, 14\nv_add_u32 v2, s7, v2")
    for k in range(1, 8): A(f"v_xor_b32 v{2+k}, {32*k}, v2")
    A("s_nop 4")
    for bb in range(2):
        for cb in range(2):
            for a in range(4):
                d = 128 + (bb * 2 + cb) * 16 + a * 4
                A(f"ds_write_b128 v{2+cb*4+a}, a[{d}:{d+3}] offset:{bb*8192}")
    A("v_lshrrev_b32 v10, 3, v0\nv_and_b32 v11, 7, v0\nv_lshlrev_b32 v12, 1, v11\nv_xor_b32 v12, v12, v10\nv_lshlrev_b32 v12, 4, v12\nv_lshl_add_u32 v12, v10, 8, v12\nv_add_u32 v12, s47, v12")
    A("v_xor_b32 v13, 16, v12\nv_xor_b32 v14, 128, v12\nv_add_u32 v14, 0x800, v14\nv_xor_b32 v15, 16, v14")
    A("s_lshl_b32 s7, s44, 2\ns_add_u32 s7, s7, s6\ns_lshl_b32 s7, s7, 16\ns_lshl_b32 s45, s5, 11\ns_add_u32 s7, s7, s45\ns_lshl_b32 s45, s43, 7\ns_add_u32 s7, s7, s45\ns_add_u32 s45, s7, 0x8000")
    A("v_lshlrev_b32 v16, 4, v11\nv_lshl_add_u32 v16, v10, 12, v16")
    A("s_waitcnt lgkmcnt(0)\ns_barrier")
    for e in range(2):
        for p in range(4):
            for hh in range(2):
                r = 32 + e * 32 + p * 8 + hh * 4
                A(f"ds_read_b128 v[{r}:{r+3}], v{12+e*2+hh} offset:{p*16384}")
    for e in range(2):
        A(f"s_waitcnt lgkmcnt({8 if e == 0 else 0})")
        r = 32 + e * 32
        for k in range(8): A(f"v_add_f32 v{r+k}, v{r+k}, v{r+8+k}\nv_add_f32 v{r+16+k}, v{r+16+k}, v{r+24+k}")
        for k in range(8): A(f"v_add_f32 v{r+k}, v{r+k}, v{r+16+k}")
        for k in range(4): A(f"v_cvt_pk_bf16_f32 v{r+8+k}, v{r+2*k}, v{r+2*k+1}")
        A(f"buffer_store_dwordx4 v[{r+8}:{r+11}], v16, {OUT}, {'s7' if e == 0 else 's45'} offen")
    if stamps:
        A("s_waitcnt vmcnt(0)"); stamp(7); A(f"s_waitcnt lgkmcnt(0)\ns_sub_u32 s76, s78, s76\ns_sub_u32 s78, s{60+2*c1}, s{60+2*c0}\ns_mov_b32 s77, 0\ns_mov_b32 s79, 0\ns_cmp_lg_u32 s6, 0\ns_cbranch_scc1 L_end\ns_lshl_b32 s3, s2, 7\ns_add_u32 s3, s3, 0x8000000\nv_mov_b32 v1, 0\ns_mov_b64 exec, 1")
        for k in range(5):
            for q in range(4): A(f"v_mov_b32 v{4+q}, s{60+4*k+q}")
            A(f"buffer_store_dwordx4 v[4:7], v1, {WS}, s3 offen offset:{16*k}\ns_nop 1")
    A("L_end:\ns_endpgm")
    A('.section .rodata,"a"\n.p2align 6\n.amdhsa_kernel %s_kernel\n  .amdhsa_next_free_vgpr 512\n  .amdhsa_next_free_sgpr 96\n  .amdhsa_accum_offset 256\n  .amdhsa_group_segment_fixed_size 0\n  .amdhsa_kernarg_size 104\n  .amdhsa_user_sgpr_count 2\n  .amdhsa_user_sgpr_kernarg_segment_ptr 1\n  .amdhsa_system_sgpr_workgroup_id_x 1\n.end_amdhsa_kernel' % NAME)
    T = "\n".join(g.L).split("\n")
    if "m" in kill: T = [t for t in T if not t.startswith("v_mfma")]
    if "d" in kill: T = [t for t in T if not t.rstrip().endswith("lds") and "lds nt" not in t]
    if "r" in kill: T = [t for t in T if not t.startswith("ds_read_b64_tr") and not t.startswith("ds_read_b128 a")]
    if "b" in kill:
        n = 0; U = []
        for t in T:
            if t == "s_barrier":
                n += 1
                if n <= 17: continue
            U.append(t)
        T = U
    open(fn, "w").write("\n".join(T) + "\n")
if __name__ == "__main__":
    kw = {}
    for a in sys.argv[2:]:
        k, v = a.split("="); kw[k] = int(v) if v.lstrip("-").isdigit() else v
    gen(sys.argv[1], **kw)
```

```python
import sys
NAME = "concat_heads__gqa_block_cached__gqa_block_cached__near_ridge"
class G:
    def __init__(s): s.L = []; s.vm = []
    def A(s, t): s.L.append(t)
    def vmop(s, tag): s.vm.append(tag)
    def vmwait(s, tag):
        idx = max(i for i, t in enumerate(s.vm) if t == tag); n = len(s.vm) - 1 - idx
        assert n <= 63, n
        s.A(f"s_waitcnt vmcnt({n})")
def interleave(g, mf, others, per=None):
    n = len(mf); k = 0
    for i, m in enumerate(mf):
        g.A(m)
        tgt = (len(others) * (i + 1) + n - 1) // n if per is None else min(len(others), per * (i + 1))
        if i == n - 1: tgt = len(others)
        while k < tgt:
            o = others[k]; k += 1
            if callable(o): o()
            else: g.A(o)
def sched(g, mf, streams):
    slots = [[] for _ in mf]
    for items, a, b in streams:
        for k, it in enumerate(items): slots[a + (k * (b - a)) // len(items)].append(it)
    for m, sl in zip(mf, slots):
        for o in [m] + sl:
            if callable(o): o()
            else: g.A(o)
def merge(*lists):
    items = []
    for li, l in enumerate(lists):
        for i, x in enumerate(l): items.append(((i + 0.5) / len(l), li, x))
    items.sort(key=lambda t: (t[0], t[1])); return [x for _, _, x in items]
def gen(fn, stamps=False, rotA=1, rotB=1, LAG=3, nt="", kill="", ntb="", pfA=0, pfB=-1, pfB2=-1, stag=0, pfKV=0, badmap=0, nt1=0, F=11, LB=3, osch=0, LA=4, pfP=0, c0=0, c1=7, pbar=0, pnt=""):
    g = G(); A = g.A
    def stamp(i):
        if stamps: A(f"s_memrealtime s[{60+2*i}:{61+2*i}]")
        if stamps and i == c0: A("s_memtime s[76:77]")
        if stamps and i == c1: A("s_memtime s[78:79]")
    A("; @launch grid=(256,1,1) block=(256,1,1) lds=163840")
    A('.amdgcn_target "amdgcn-amd-amdhsa--gfx950"\n.text\n.globl %s_kernel\n.p2align 8\n.type %s_kernel,@function\n%s_kernel:' % (NAME, NAME, NAME))
    A("s_cmp_ge_u32 s2, 256\ns_cbranch_scc1 L_end")
    stamp(0)
    A(("s_lshr_b32 s3, s2, 5\ns_and_b32 s4, s2, 31" if badmap else "s_and_b32 s3, s2, 7\ns_lshr_b32 s4, s2, 3") + "\ns_lshr_b32 s5, s3, 2\ns_and_b32 s3, s3, 3\ns_mul_i32 s7, s5, 40")
    A("s_load_dwordx2 s[28:29], s[0:1], 80\ns_load_dwordx2 s[32:33], s[0:1], 88\ns_load_dwordx2 s[36:37], s[0:1], 96")
    A("s_add_u32 s0, s0, s7\ns_addc_u32 s1, s1, 0")
    A("s_load_dwordx2 s[8:9], s[0:1], 0\ns_load_dwordx2 s[12:13], s[0:1], 24\ns_load_dwordx2 s[16:17], s[0:1], 32\ns_load_dwordx2 s[20:21], s[0:1], 8\ns_load_dwordx2 s[24:25], s[0:1], 16")
    A("v_lshrrev_b32 v1, 6, v0\nv_and_b32 v0, 63, v0\nv_readfirstlane_b32 s6, v1")
    for r, n in ((8, 0x100000), (12, 0x800000), (16, 0x800000), (20, 0x80000), (24, 0x80000), (28, 0x200000), (32, 256), (36, 0x10000000)):
        A(f"s_mov_b32 s{r+2}, {hex(n)}\ns_mov_b32 s{r+3}, 0x20000")
    X, WQ, WO, KC, VC, OUT, DBG, WS = ["s[%d:%d]" % (r, r + 3) for r in (8, 12, 16, 20, 24, 28, 32, 36)]
    A("s_and_b32 s40, s4, 3\ns_lshr_b32 s44, s4, 2\ns_lshl_b32 s41, s3, 3\ns_add_u32 s41, s41, s44\ns_lshl_b32 s42, s40, 2\ns_add_u32 s42, s42, s6")
    A("s_lshl_b32 s43, s3, 2\ns_add_u32 s43, s43, s40")
    A("v_lshrrev_b32 v1, 3, v0\nv_lshrrev_b32 v6, 4, v0\nv_and_b32 v7, 7, v0\nv_xor_b32 v7, v7, v6\nv_lshlrev_b32 v7, 4, v7\nv_lshl_add_u32 v2, v1, 11, v7")
    A("s_lshl_b32 s7, s42, 16\nv_add_u32 v2, s7, v2\nv_xor_b32 v3, 64, v2\nv_add_u32 v3, 0x4000, v3\nv_add_u32 v4, 0x8000, v2\nv_add_u32 v5, 0x8000, v3")
    A("v_lshlrev_b32 v1, 2, v6\nv_and_b32 v7, 15, v0\nv_xor_b32 v7, v7, v1\nv_lshlrev_b32 v7, 4, v7\nv_lshl_add_u32 v6, v6, 13, v7")
    A("s_lshl_b32 s7, s6, 17\ns_lshl_b32 s45, s41, 8\ns_add_u32 s7, s7, s45\nv_add_u32 v6, s7, v6\nv_add_u32 v7, 0x8000, v6\nv_add_u32 v8, 0x10000, v6\nv_add_u32 v9, 0x18000, v6")
    A("v_lshrrev_b32 v1, 4, v0\nv_and_b32 v10, 15, v0\nv_xor_b32 v10, v10, v1\nv_lshlrev_b32 v10, 4, v10\nv_lshl_add_u32 v10, v1, 8, v10")
    A("v_xor_b32 v11, 64, v10\nv_xor_b32 v12, 128, v10\nv_xor_b32 v13, 192, v10")
    if rotA == 0: A("s_mov_b32 s46, 0")
    elif rotA == 1: A("s_add_u32 s46, s40, s44\ns_and_b32 s46, s46, 1\ns_lshl_b32 s46, s46, 3")
    elif rotA == 3: A("s_add_u32 s46, s40, s44\ns_and_b32 s46, s46, 3")
    elif rotA == 4: A("s_add_u32 s46, s40, s44\ns_and_b32 s46, s46, 3\ns_lshl_b32 s89, s5, 1\ns_add_u32 s46, s46, s89\ns_and_b32 s46, s46, 3")
    else: A("s_lshl_b32 s46, s40, 2\ns_lshl_b32 s7, s44, 1\ns_add_u32 s46, s46, s7\ns_and_b32 s46, s46, 15")
    A("s_lshl_b32 s47, s6, 12\ns_lshl_b32 s48, s6, 13")
    A("s_memrealtime s[90:91]\ns_waitcnt lgkmcnt(0)\nv_mov_b32 v53, 0")
    A(f"s_or_b32 s7, s2, s6\ns_cmp_lg_u32 s7, 0\ns_cbranch_scc1 L_nonon\ns_or_b32 s90, s90, 1\nv_mov_b32 v54, s90\ns_mov_b64 exec, 1\nbuffer_store_dword v54, v53, {DBG}, 0 offen sc1\ns_mov_b64 exec, -1\nL_nonon:")
    def dma(v, srd, soff, m0expr, tag, extra=""):
        def f():
            A(f"s_add_u32 m0, {m0expr[0]}, {hex(m0expr[1])}")
            A("s_nop 0")
            A(f"buffer_load_dwordx4 {v}, {srd}, {soff} offen {extra} lds"); g.vmop(tag)
        return f
    def chunk_dmas(i):
        s = i & 3
        l = [f"s_lshl_b32 s49, s46, 7\ns_lshl_b32 s50, s46, 19\ns_add_u32 s46, s46, 1\ns_and_b32 s46, s46, 15"]
        if rotA == 3: l = [f"s_or_b32 s50, s46, {i & 12}\ns_lshl_b32 s49, s50, 7\ns_lshl_b32 s50, s50, 19\ns_add_u32 s46, s46, 1\ns_and_b32 s46, s46, 3"]
        if rotA == 4: l = [f"s_add_u32 s50, s89, {i}\ns_and_b32 s50, s50, 12\ns_or_b32 s50, s46, s50\ns_lshl_b32 s49, s50, 7\ns_lshl_b32 s50, s50, 19\ns_add_u32 s46, s46, 1\ns_and_b32 s46, s46, 3"]
        for j in range(4):
            l.append(dma(f"v{2+j}", X, "s49", ("s47", s * 32768 + j * 1024), f"c{i}", "nt" if (nt1 == 2 and (i & 3) == 0) else ""))
            l.append(dma(f"v{6+j}", WQ, "s50", ("s47", s * 32768 + 16384 + j * 1024), f"c{i}", "nt" if (nt1 and (i & 3) == 0) else nt))
        return l
    def tile_dmas(srd, sreg, tag):
        l = []
        for j in range(8):
            l.append(f"s_add_u32 s51, {sreg}, {j*1024}")
            l.append(dma(f"v{10+(j&3)}", srd, "s51", ("s48", 131072 + j * 1024), tag))
        return l
    def run(l):
        for o in l:
            if callable(o): o()
            else: A(o)
    A("s_lshl_b32 s80, s4, 2\ns_add_u32 s80, s80, s6")
    A("v_lshrrev_b32 v40, 4, v0\nv_and_b32 v41, 15, v0\nv_lshlrev_b32 v41, 7, v41\nv_lshl_add_u32 v42, v40, 11, v41\nv_lshl_add_u32 v40, v40, 13, v41")
    A("s_lshl_b32 s81, s80, 15\ns_lshl_b32 s7, s3, 11\ns_add_u32 s81, s81, s7\ns_add_u32 s82, s81, 0x400000\ns_lshl_b32 s83, s80, 13")
    A("v_lshrrev_b32 v43, 4, v0\nv_lshlrev_b32 v43, 21, v43\nv_bfe_u32 v41, v0, 2, 2\nv_lshl_add_u32 v43, v41, 11, v43\nv_and_b32 v41, 3, v0\nv_lshl_add_u32 v43, v41, 7, v43")
    A("s_lshl_b32 s84, s80, 13\ns_lshl_b32 s7, s3, 9\ns_add_u32 s84, s84, s7\ns_add_u32 s85, s84, 0x100000")
    def pf(v, srd, so, d):
        def f():
            A(f"buffer_load_dword v{d}, {v}, {srd}, {so} offen"); g.vmop("pf")
        return f
    PFA = [pf("v42", X, "s83", 44), pf("v40", WQ, "s81", 45), pf("v40", WQ, "s82", 46)]
    PFB = [pf("v43", WO, "s84", 47), pf("v43", WO, "s85", 48)]
    A("v_and_b32 v49, 31, v0\nv_lshlrev_b32 v49, 7, v49\ns_lshl_b32 s86, s80, 12")
    A("v_and_b32 v50, 7, v0\nv_lshlrev_b32 v50, 7, v50\ns_lshr_b32 s87, s80, 3\ns_lshl_b32 s87, s87, 2\ns_add_u32 s87, s87, s3\ns_lshl_b32 s87, s87, 3\ns_and_b32 s7, s80, 7\ns_add_u32 s87, s87, s7\ns_lshl_b32 s87, s87, 10")
    A("s_and_b32 s88, s4, %d" % (stag - 1 if stag else 0))
    lab = [0]
    def cpf(k, slot):
        def f():
            lab[0] += 1
            A(f"s_cmp_lg_u32 s88, {slot}\ns_cbranch_scc1 L_pf{lab[0]}\nbuffer_load_dword v{22+k}, v25, {WO}, s{84+k} offen {pnt}\nL_pf{lab[0]}:")
        return f
    if pfA == 1: run(PFA)
    run(chunk_dmas(0))
    if pbar: A("s_barrier")
    if pfA == 2: run(PFA)
    if pfKV: run([pf("v50", KC, "s87", 51), pf("v49", VC, "s86", 52)])
    run(chunk_dmas(1))
    if pbar: A("s_barrier")
    A("s_lshl_b32 s52, s42, 2\ns_add_u32 s52, s52, s3\ns_lshl_b32 s52, s52, 13")
    A("s_lshl_b32 s53, s44, 3\ns_add_u32 s53, s53, s6\ns_lshl_b32 s53, s53, 13\ns_add_u32 s54, s53, 0x8000")
    if LA == 4:
        run(chunk_dmas(2))
        if pbar: A("s_barrier")
        run(tile_dmas(KC, "s52", "K")); run(chunk_dmas(3))
    A(f"buffer_load_dword v54, v53, {DBG}, 0 offen"); g.vmop("nonce")
    if pfA == 3: run(PFA)
    if pfB == 100: run(PFB)
    A("v_and_b32 v1, 31, v0\nv_lshrrev_b32 v22, 5, v0\nv_bfe_u32 v14, v0, 1, 3\nv_xor_b32 v14, v14, v22\nv_lshlrev_b32 v14, 4, v14\nv_lshl_add_u32 v14, v1, 7, v14\nv_add_u32 v14, s47, v14")
    A("v_xor_b32 v15, 32, v14\nv_xor_b32 v16, 64, v14\nv_xor_b32 v17, 96, v14")
    A("v_bfe_u32 v23, v0, 2, 2\nv_lshl_add_u32 v18, v22, 3, v23\nv_lshlrev_b32 v18, 8, v18\nv_lshl_add_u32 v18, v23, 6, v18")
    A("v_bfe_u32 v24, v0, 4, 1\nv_lshl_add_u32 v18, v24, 5, v18\nv_and_b32 v25, 1, v0\nv_lshl_add_u32 v18, v25, 4, v18\nv_bfe_u32 v25, v0, 1, 1\nv_lshl_add_u32 v18, v25, 3, v18\nv_add_u32 v18, 0x4000, v18")
    A("v_xor_b32 v19, 64, v18\nv_xor_b32 v20, 128, v18\nv_xor_b32 v21, 192, v18")
    A("v_lshl_add_u32 v26, v22, 3, v23\nv_lshlrev_b32 v26, 7, v26\nv_lshrrev_b32 v25, 1, v23\nv_lshl_add_u32 v26, v25, 6, v26\nv_lshl_add_u32 v26, v24, 5, v26\nv_and_b32 v25, 3, v0\nv_lshl_add_u32 v26, v25, 3, v26\nv_add_u32 v26, s48, v26\nv_xor_b32 v27, 64, v26")
    A("v_and_b32 v25, 15, v0\nv_xor_b32 v25, v25, v22\nv_lshlrev_b32 v25, 4, v25\nv_lshl_add_u32 v28, v1, 8, v25\nv_add_u32 v28, s48, v28\nv_add_u32 v28, 0x20000, v28")
    A("v_lshrrev_b32 v25, 3, v0\nv_lshlrev_b32 v30, 2, v24\nv_and_b32 v29, 7, v0\nv_xor_b32 v30, v30, v29\nv_lshlrev_b32 v30, 4, v30\nv_lshl_add_u32 v30, v25, 11, v30")
    A("s_lshl_b32 s7, s43, 7\ns_lshl_b32 s45, s6, 21\ns_add_u32 s7, s7, s45\nv_add_u32 v30, s7, v30\nv_lshlrev_b32 v31, 4, v0")
    if rotB == 0: A("s_mov_b32 s55, 0")
    elif rotB == 1: A("s_and_b32 s55, s44, 1\ns_lshl_b32 s55, s55, 2")
    elif rotB == 2: A("s_and_b32 s55, s44, 3\ns_lshl_b32 s55, s55, 1")
    elif rotB == 4: A("s_lshl_b32 s55, s40, 1")
    elif rotB == 5: A("s_mov_b32 s55, s40")
    else: A("s_mov_b32 s55, s44")
    A("s_lshl_b32 s56, s55, 1")
    def piece_off(u): return (u % 5) * 32768
    def wo_dmas(u):
        l = ["s_lshl_b32 s49, s56, 17\ns_add_u32 s56, s56, 1\ns_and_b32 s56, s56, 15"]
        if rotB == 5: l = [f"s_or_b32 s49, s56, {u & 8}\ns_lshl_b32 s49, s49, 17\ns_add_u32 s56, s56, 1\ns_and_b32 s56, s56, 7"]
        for j in range(8):
            if j: l.append("s_add_u32 s49, s49, 0x4000")
            l.append(dma("v30", WO, "s49", ("s48", piece_off(u) + j * 1024), f"w{u}", ntb))
        return l
    def tile_reads(areg):
        l = []
        for j in range(8):
            l.append(f"v_xor_b32 v29, {32*j}, v28\nds_read_b128 a[{areg+4*j}:{areg+4*j+3}], v29")
        return l
    def chunk_reads(i):
        s = i & 3; b = (i & 1) * 80; l = []
        for ks in range(4):
            r = b + ks * 20
            l.append(f"ds_read_b128 a[{r}:{r+3}], v{14+ks} offset:{s*32768 if s < 2 else (s-2)*32768}" if s < 2 else f"ds_read_b128 a[{r}:{r+3}], v{32+ks} offset:{(s-2)*32768}")
            for blk in range(4):
                for rd in range(2):
                    q = r + 4 + blk * 4 + rd * 2
                    l.append(f"ds_read_b64_tr_b16 a[{q}:{q+1}], v{(18 if s < 2 else 36)+blk} offset:{(s&1)*32768 + (ks*16+rd*4)*256}")
        return l
    for k in range(8): A(f"v_add_u32 v{32+k}, 0x10000, v{14+k}")
    A("v_mov_b32 v25, v43")
    def chunk_mfma(i):
        b = (i & 1) * 80; l = []
        for ks in range(4):
            r = b + ks * 20
            for blk in range(4):
                d = 128 + blk * 16; c = "0" if (i == 0 and ks == 0) else f"v[{d}:{d+15}]"
                l.append(f"v_mfma_f32_32x32x16_bf16 v[{d}:{d+15}], a[{r+4+blk*4}:{r+7+blk*4}], a[{r}:{r+3}], {c}")
        return l
    g.vmwait("c0"); A("s_barrier"); stamp(1); run(chunk_reads(0) if LA == 4 else merge(chunk_reads(0), chunk_dmas(2)))
    for i in range(16):
        A("s_waitcnt lgkmcnt(0)")
        if i == 4:
            A(f"s_mov_b32 s45, 0\nL_nonce:\nv_readfirstlane_b32 s90, v54\ns_cmp_lg_u32 s90, 0\ns_cbranch_scc1 L_nonced\ns_add_u32 s45, s45, 1\ns_cmp_ge_u32 s45, 0x200000\ns_cbranch_scc1 L_nonced\ns_sleep 2\nbuffer_load_dword v54, v53, {DBG}, 0 offen sc1\ns_waitcnt vmcnt(0)\ns_branch L_nonce\nL_nonced:")
        if i < 15:
            g.vmwait(f"c{i+1}"); A("s_barrier")
            rd = chunk_reads(i + 1)
        else:
            A("s_barrier"); rd = []
        if i + LA < 16: dm = chunk_dmas(i + LA)
        else: dm = wo_dmas(i + LA - 16)
        if LA == 3 and i == 0: dm = tile_dmas(KC, "s52", "K") + dm
        if i == 2: rd = rd + tile_reads(160)
        if i == 3: dm = tile_dmas(VC, "s53", "V0") + dm
        if i == 6: rd = rd + tile_reads(192)
        if i == 7: dm = tile_dmas(VC, "s54", "V1") + dm
        if i == 10: rd = rd + tile_reads(224)
        if i == 15:
            for q in range(LA, LB): dm = dm + wo_dmas(q)
        if stag:
            if pfB <= i < pfB + stag: dm = dm + [cpf(0, i - pfB)]
            if pfB2 <= i < pfB2 + stag: dm = dm + [cpf(1, i - pfB2)]
        else:
            if i == pfB: dm = dm + PFB[:1]
            if i == pfB2: dm = dm + PFB[1:]
        sched(g, chunk_mfma(i), [(rd, 0, F + 1), (dm, 0, 16)])
    stamp(2)
    def wo_reads(u):
        b = (u & 1) * 32; l = []; po = piece_off(u)
        for ks in range(4):
            for cb in range(2):
                for rd in range(2):
                    q = b + (ks * 2 + cb) * 4 + rd * 2
                    l.append(f"ds_read_b64_tr_b16 a[{q}:{q+1}], v{[26,14,16][po>>16]+cb} offset:{(po & 65535) + (ks*16+rd*4)*128}")
        return l
    A("v_add_u32 v14, 0x10000, v26\nv_add_u32 v15, 0x10000, v27\nv_add_u32 v16, 0x20000, v26\nv_add_u32 v17, 0x20000, v27")
    A("s_nop 7")
    for k in range(32): A(f"v_cvt_pk_bf16_f32 v{192+k}, v{128+2*k}, v{129+2*k}")
    g.vmwait("w0"); run(wo_reads(0))
    for k in range(8):
        A(f"v_mfma_f32_32x32x16_bf16 v[224:239], a[{160+4*k}:{163+4*k}], v[{192+4*k}:{195+4*k}], " + ("0" if k == 0 else "v[224:239]"))
    A("s_mov_b32 s7, 0x3e0293ee")
    A("s_lshl_b32 s45, s5, 4\ns_add_u32 s45, s45, s42\ns_lshl_b32 s45, s45, 5\ns_add_u32 s45, s45, s41\ns_lshl_b32 s45, s45, 11")
    A("s_nop 7")
    A("v_max3_f32 v240, v224, v225, v226")
    for k in range(227, 239, 2): A(f"v_max3_f32 v240, v240, v{k}, v{k+1}")
    A("v_max_f32 v240, v240, v239\nv_mov_b32 v241, v240\ns_nop 1\nv_permlane32_swap_b32 v240, v241\ns_nop 1\nv_max_f32 v240, v240, v241\nv_mul_f32 v240, s7, v240")
    for k in range(16): A(f"v_fma_f32 v{224+k}, v{224+k}, s7, -v240")
    for k in range(16): A(f"v_exp_f32 v{224+k}, v{224+k}")
    A("v_add_f32 v240, v224, v225\nv_add_f32 v241, v226, v227")
    for k in range(228, 240, 2): A(f"v_add_f32 v240, v240, v{k}\nv_add_f32 v241, v241, v{k+1}")
    A("v_add_f32 v240, v240, v241\nv_mov_b32 v241, v240\ns_nop 1\nv_permlane32_swap_b32 v240, v241\ns_nop 1\nv_add_f32 v240, v240, v241\nv_rcp_f32 v240, v240\ns_nop 0")
    for k in range(16): A(f"v_mul_f32 v{224+k}, v{224+k}, v240")
    for k in range(8): A(f"v_cvt_pk_bf16_f32 v{240+k}, v{224+2*k}, v{225+2*k}")
    A(f"buffer_store_dwordx4 v[240:243], v31, {WS}, s45 offen sc1"); g.vmop("P")
    A(f"buffer_store_dwordx4 v[244:247], v31, {WS}, s45 offen offset:1024 sc1"); g.vmop("P")
    stamp(3)
    A("s_lshl_b32 s57, s5, 2\ns_add_u32 s57, s57, s40\ns_lshl_b32 s57, s57, 2\ns_add_u32 s57, s57, s3\ns_lshl_b32 s57, s57, 6\ns_add_u32 s57, s57, s44\ns_lshl_b32 s57, s57, 2\ns_add_u32 s57, s57, 0x400000")
    A("s_lshl_b32 s58, s5, 2\ns_lshr_b32 s7, s44, 1\ns_add_u32 s58, s58, s7\ns_lshl_b32 s58, s58, 2\ns_add_u32 s58, s58, s6\ns_lshl_b32 s58, s58, 8\ns_add_u32 s58, s58, 0x400000")
    A("s_lshl_b32 s59, s5, 3\ns_add_u32 s59, s59, s44\ns_lshl_b32 s59, s59, 3\ns_add_u32 s59, s59, s6\ns_lshl_b32 s59, s59, 14")
    A("v_mov_b32 v1, 0\nv_mov_b32 v2, s90\nv_and_b32 v4, 7, v0\nv_lshlrev_b32 v4, 2, v4")
    def p_loads(h):
        b = 64 + (h & 3) * 16
        l = ["s_lshl_b32 s50, s55, 11\ns_add_u32 s50, s50, s59\ns_add_u32 s51, s50, 0x10000\ns_add_u32 s55, s55, 1\ns_and_b32 s55, s55, 7"]
        if rotB == 5: l = [f"s_or_b32 s50, s55, {h & 4}\ns_lshl_b32 s50, s50, 11\ns_add_u32 s50, s50, s59\ns_add_u32 s51, s50, 0x10000\ns_add_u32 s55, s55, 1\ns_and_b32 s55, s55, 3"]
        def ld(r, so, off):
            def f():
                A(f"buffer_load_dwordx4 a[{r}:{r+3}], v31, {WS}, {so} offen offset:{off} sc1"); g.vmop(f"p{h}")
            return f
        for bb in range(2):
            for j in range(2): l.append(ld(b + (bb * 2 + j) * 4, "s50" if bb == 0 else "s51", j * 1024))
        return l
    def vw_mfma(u):
        b = (u & 1) * 32; h = u >> 1; l = []
        for ks in range(4):
            kk = (u & 1) * 4 + ks
            for bb in range(2):
                for cb in range(2):
                    d = 128 + (h & 1) * 64 + (bb * 2 + cb) * 16; c = "0" if kk == 0 else f"v[{d}:{d+15}]"
                    va = 192 + bb * 32 + kk * 4; wa = b + (ks * 2 + cb) * 4
                    l.append(f"v_mfma_f32_32x32x16_bf16 v[{d}:{d+15}], a[{va}:{va+3}], a[{wa}:{wa+3}], {c}")
        return l
    def cvts(h):
        return [f"v_cvt_pk_bf16_f32 v{32+(h%3)*32+k}, v{128+(h&1)*64+2*k}, v{129+(h&1)*64+2*k}" for k in range(32)]
    def out_mfma(h):
        l = []
        for j in range(2):
            for bb in range(2):
                for cb in range(2):
                    d = 128 + (bb * 2 + cb) * 16; c = "0" if (h == 0 and j == 0) else f"a[{d}:{d+15}]"
                    w = 32 + (h % 3) * 32 + ((bb * 2 + cb) * 2 + j) * 4; p = 64 + (h & 3) * 16 + (bb * 2 + j) * 4
                    l.append(f"v_mfma_f32_32x32x16_bf16 a[{d}:{d+15}], v[{w}:{w+3}], a[{p}:{p+3}], {c}")
        return l
    outsched = {7: [0], 9: [1], 11: [2], 12: [3], 13: [4], 14: [5], 15: [6]}
    psched = {5: [0, 1], 6: [2], 7: [3], 8: [4], 10: [5], 12: [6], 13: [7]}
    if osch == 1:
        outsched = {7: [0], 8: [1], 9: [2], 10: [3], 11: [4], 13: [5], 15: [6]}
        psched = {5: [0, 1], 6: [2], 7: [3], 8: [4], 9: [5], 10: [6], 11: [7]}
    for u in range(16):
        A("s_waitcnt lgkmcnt(0)")
        if u == 1:
            g.vmwait("P"); A("s_barrier\ns_cmp_lg_u32 s6, 0\ns_cbranch_scc1 L_nosig\ns_mov_b64 exec, 1")
            A(f"buffer_store_dword v2, v1, {WS}, s57 offen sc1\ns_mov_b64 exec, -1\nL_nosig:")
            stamp(4)
        if u == 4:
            A(f"buffer_load_dword v3, v4, {WS}, s58 offen sc1"); g.vmop("poll")
        if u == 5:
            g.vmwait("poll"); A("s_mov_b32 s45, 0\nL_poll:\nv_cmp_ne_u32 vcc, v2, v3\ns_nop 4\ns_cbranch_vccz L_polled\ns_add_u32 s45, s45, 1\ns_cmp_ge_u32 s45, 0x200000\ns_cbranch_scc1 L_polled\ns_sleep 1")
            A(f"buffer_load_dword v3, v4, {WS}, s58 offen sc1\ns_waitcnt vmcnt(0)\ns_branch L_poll\nL_polled:")
            stamp(5)
        rd = []
        if u < 15: g.vmwait(f"w{u+1}"); rd = wo_reads(u + 1)
        dm = []
        for h in psched.get(u, []): dm += p_loads(h)
        if u + LB < 16: dm += wo_dmas(u + LB)
        if stag and pfB2 <= u + 16 < pfB2 + stag: dm = dm + [cpf(1, u + 16 - pfB2)]
        cv = cvts(u // 2 - 1) if (u >= 2 and u % 2 == 0) else []
        mf = vw_mfma(u)
        for h in outsched.get(u, []):
            om = out_mfma(h)
            def w(h=h, m=om[0]): g.vmwait(f"p{h}"); A(m)
            mf = mf + [w] + om[1:]
        sched(g, mf, [(rd, 0, F - 1), (dm, 0, len(mf)), (cv, 5, 16)])
    A("s_nop 3")
    run(cvts(7)); g.vmwait("p7"); A("s_nop 0"); run(out_mfma(7))
    stamp(6)
    A("s_barrier")
    A("v_and_b32 v1, 31, v0\nv_lshrrev_b32 v22, 5, v0\nv_and_b32 v25, 15, v0\nv_xor_b32 v25, v25, v22\nv_lshlrev_b32 v25, 4, v25\nv_lshl_add_u32 v2, v1, 8, v25\ns_lshl_b32 s7, s6, 14\nv_add_u32 v2, s7, v2")
    for k in range(1, 8): A(f"v_xor_b32 v{2+k}, {32*k}, v2")
    A("s_nop 4")
    for bb in range(2):
        for cb in range(2):
            for a in range(4):
                d = 128 + (bb * 2 + cb) * 16 + a * 4
                A(f"ds_write_b128 v{2+cb*4+a}, a[{d}:{d+3}] offset:{bb*8192}")
    A("v_lshrrev_b32 v10, 3, v0\nv_and_b32 v11, 7, v0\nv_lshlrev_b32 v12, 1, v11\nv_xor_b32 v12, v12, v10\nv_lshlrev_b32 v12, 4, v12\nv_lshl_add_u32 v12, v10, 8, v12\nv_add_u32 v12, s47, v12")
    A("v_xor_b32 v13, 16, v12\nv_xor_b32 v14, 128, v12\nv_add_u32 v14, 0x800, v14\nv_xor_b32 v15, 16, v14")
    A("s_lshl_b32 s7, s44, 2\ns_add_u32 s7, s7, s6\ns_lshl_b32 s7, s7, 16\ns_lshl_b32 s45, s5, 11\ns_add_u32 s7, s7, s45\ns_lshl_b32 s45, s43, 7\ns_add_u32 s7, s7, s45\ns_add_u32 s45, s7, 0x8000")
    A("v_lshlrev_b32 v16, 4, v11\nv_lshl_add_u32 v16, v10, 12, v16")
    A("s_waitcnt lgkmcnt(0)\ns_barrier")
    for e in range(2):
        for p in range(4):
            for hh in range(2):
                r = 32 + e * 32 + p * 8 + hh * 4
                A(f"ds_read_b128 v[{r}:{r+3}], v{12+e*2+hh} offset:{p*16384}")
    for e in range(2):
        A(f"s_waitcnt lgkmcnt({8 if e == 0 else 0})")
        r = 32 + e * 32
        for k in range(8): A(f"v_add_f32 v{r+k}, v{r+k}, v{r+8+k}\nv_add_f32 v{r+16+k}, v{r+16+k}, v{r+24+k}")
        for k in range(8): A(f"v_add_f32 v{r+k}, v{r+k}, v{r+16+k}")
        for k in range(4): A(f"v_cvt_pk_bf16_f32 v{r+8+k}, v{r+2*k}, v{r+2*k+1}")
        A(f"buffer_store_dwordx4 v[{r+8}:{r+11}], v16, {OUT}, {'s7' if e == 0 else 's45'} offen")
    if stamps:
        A("s_waitcnt vmcnt(0)"); stamp(7); A(f"s_waitcnt lgkmcnt(0)\ns_sub_u32 s76, s78, s76\ns_sub_u32 s78, s{60+2*c1}, s{60+2*c0}\ns_mov_b32 s77, 0\ns_mov_b32 s79, 0\ns_cmp_lg_u32 s6, 0\ns_cbranch_scc1 L_end\ns_lshl_b32 s3, s2, 7\ns_add_u32 s3, s3, 0x8000000\nv_mov_b32 v1, 0\ns_mov_b64 exec, 1")
        for k in range(5):
            for q in range(4): A(f"v_mov_b32 v{4+q}, s{60+4*k+q}")
            A(f"buffer_store_dwordx4 v[4:7], v1, {WS}, s3 offen offset:{16*k}\ns_nop 1")
    if stamps == 2:
        A(f"s_not_b32 s7, s60\nv_mov_b32 v4, s7\nbuffer_atomic_umax v4, v1, {DBG}, 0 offen offset:4 sc1")
        for j in range(8): A(f"v_mov_b32 v{5+j}, s{60+2*j}\nbuffer_atomic_umax v{5+j}, v1, {DBG}, 0 offen offset:{8+4*j} sc1")
    A("L_end:\ns_endpgm")
    A('.section .rodata,"a"\n.p2align 6\n.amdhsa_kernel %s_kernel\n  .amdhsa_next_free_vgpr 512\n  .amdhsa_next_free_sgpr 96\n  .amdhsa_accum_offset 256\n  .amdhsa_group_segment_fixed_size 0\n  .amdhsa_kernarg_size 104\n  .amdhsa_user_sgpr_count 2\n  .amdhsa_user_sgpr_kernarg_segment_ptr 1\n  .amdhsa_system_sgpr_workgroup_id_x 1\n.end_amdhsa_kernel' % NAME)
    T = "\n".join(g.L).split("\n")
    if "m" in kill: T = [t for t in T if not t.startswith("v_mfma")]
    if "d" in kill: T = [t for t in T if not t.rstrip().endswith("lds") and "lds nt" not in t]
    if "r" in kill: T = [t for t in T if not t.startswith("ds_read_b64_tr") and not t.startswith("ds_read_b128 a")]
    if "b" in kill:
        n = 0; U = []
        for t in T:
            if t == "s_barrier":
                n += 1
                if n <= 17: continue
            U.append(t)
        T = U
    open(fn, "w").write("\n".join(T) + "\n")
if __name__ == "__main__":
    kw = {}
    for a in sys.argv[2:]:
        k, v = a.split("="); kw[k] = int(v) if v.lstrip("-").isdigit() else v
    gen(sys.argv[1], **kw)
```

```python
import sys
from gen import G, sched, merge, NAME
def gen(fn, stamps=0, kill="", pfB=5, pfB2=13, stag=8, F=11, LB=3, c0=0, c1=7, pollu=4, pfP=0, rotB=5, sp=-1, DA=16, DB=99, vpf=1, early=0, xs=0, st1=1, st2=1, stag2=8, wflag=0, ED=30, sh1=0, sh2=0, pw=0, tA=0, tD=4):
    g = G(); A = g.A
    def stamp(i, force=False):
        if sp >= 0 and 1 <= i <= 7 and not force: return
        if stamps:
            A(f"s_memrealtime s[{60+2*i}:{61+2*i}]")
            if i == c0: A("s_memtime s[76:77]")
            if i == c1: A("s_memtime s[78:79]")
    def run(l):
        for o in l:
            if callable(o): o()
            else: A(o)
    A("; @launch grid=(256,1,1) block=(256,1,1) lds=163840")
    A('.amdgcn_target "amdgcn-amd-amdhsa--gfx950"\n.text\n.globl %s_kernel\n.p2align 8\n.type %s_kernel,@function\n%s_kernel:' % (NAME, NAME, NAME))
    A("s_cmp_ge_u32 s2, 256\ns_cbranch_scc1 L_end")
    A("s_bfe_u32 s5, s2, 0x10002\ns_mul_i32 s7, s5, 40\ns_add_u32 s92, s0, s7\ns_addc_u32 s93, s1, 0")
    A("s_load_dwordx2 s[8:9], s[92:93], 0\ns_load_dwordx2 s[12:13], s[92:93], 24\ns_load_dwordx2 s[16:17], s[92:93], 32\ns_load_dwordx2 s[20:21], s[92:93], 8\ns_load_dwordx2 s[24:25], s[92:93], 16")
    A("s_load_dwordx2 s[28:29], s[0:1], 80\ns_load_dwordx2 s[32:33], s[0:1], 88\ns_load_dwordx2 s[36:37], s[0:1], 96\ns_memrealtime s[90:91]")
    stamp(0)
    A("v_lshrrev_b32 v1, 6, v0\nv_and_b32 v0, 63, v0\nv_readfirstlane_b32 s6, v1\ns_and_b32 s3, s2, 3\ns_lshr_b32 s4, s2, 3")
    for r, n in ((8, 0x100000), (12, 0x800000), (16, 0x800000), (20, 0x80000), (24, 0x80000), (28, 0x200000), (32, 256), (36, 0x10000000)):
        A(f"s_mov_b32 s{r+2}, {hex(n)}\ns_mov_b32 s{r+3}, 0x20000")
    X, WQ, WO, KC, VC, OUT, DBG, WS = ["s[%d:%d]" % (r, r + 3) for r in (8, 12, 16, 20, 24, 28, 32, 36)]
    A("s_and_b32 s40, s4, 3\ns_lshr_b32 s44, s4, 2\ns_lshl_b32 s41, s3, 3\ns_add_u32 s41, s41, s44\ns_lshl_b32 s42, s40, 2\ns_add_u32 s42, s42, s6")
    A("v_lshrrev_b32 v1, 3, v0\nv_lshrrev_b32 v6, 4, v0\nv_and_b32 v7, 7, v0\nv_xor_b32 v7, v7, v6\nv_lshlrev_b32 v7, 4, v7\nv_lshl_add_u32 v2, v1, 11, v7")
    A("s_lshl_b32 s7, s42, 16\nv_add_u32 v2, s7, v2\nv_xor_b32 v3, 64, v2\nv_add_u32 v5, 0xb400, v3\nv_add_u32 v3, 0x3c00, v3\nv_add_u32 v4, 0x7800, v2")
    A("v_lshlrev_b32 v1, 2, v6\nv_and_b32 v7, 15, v0\nv_xor_b32 v7, v7, v1\nv_lshlrev_b32 v7, 4, v7\nv_lshl_add_u32 v6, v6, 13, v7")
    A("s_lshl_b32 s7, s6, 17\ns_lshl_b32 s45, s41, 8\ns_add_u32 s7, s7, s45\nv_add_u32 v6, s7, v6\nv_add_u32 v7, 0x7c00, v6\nv_add_u32 v8, 0xf800, v6\nv_add_u32 v9, 0x17400, v6")
    A("s_add_u32 s46, s40, s44\ns_and_b32 s46, s46, 3\ns_lshl_b32 s47, s6, 12\ns_lshl_b32 s48, s6, 13")
    def dma(v, srd, soff, j, tag, pre=None):
        def f():
            if pre: A(pre)
            A(f"buffer_load_dwordx4 {v}, {srd}, {soff} offen offset:{j*1024} lds"); g.vmop(tag)
        return f
    def chunk_dmas(i):
        s = i & 3; l = []
        for j in range(4): l.append(dma(f"v{6+j}", WQ, "s50", j, f"c{i}", None if j else f"s_add_u32 m0, s47, {hex(s*32768+16384)}\n" + (f"s_or_b32 s49, s46, {i & 12}" if (i < tA or not tA) else f"s_mov_b32 s49, {i}") + "\ns_lshl_b32 s50, s49, 19"))
        for j in range(4): l.append(dma(f"v{2+j}", X, "s49", j, f"c{i}", None if j else f"s_add_u32 m0, s47, {hex(s*32768)}\ns_lshl_b32 s49, s49, 7\ns_add_u32 s46, s46, 1\ns_and_b32 s46, s46, 3"))
        return l
    def tile_dmas(srd, sreg, tag, piece):
        return [dma(f"v{10+(j&3)}", srd, "s51", j & 3, tag, None if j & 3 else f"s_add_u32 m0, s48, {hex(piece*32768+j*1024)}\ns_add_u32 s51, {sreg}, {j*1024}") for j in range(8)]
    A("s_waitcnt lgkmcnt(0)")
    run(chunk_dmas(0))
    A(f"v_mov_b32 v53, 0\ns_or_b32 s7, s2, s6\ns_cmp_lg_u32 s7, 0\ns_cbranch_scc1 L_nonon\ns_or_b32 s90, s90, 1\nv_mov_b32 v54, s90\ns_mov_b64 exec, 1\nbuffer_store_dword v54, v53, {DBG}, 0 offen sc1\ns_mov_b64 exec, -1\nL_nonon:")
    A("s_lshl_b32 s80, s4, 2\ns_add_u32 s80, s80, s6\nv_and_b32 v49, 31, v0\nv_lshlrev_b32 v49, 7, v49\ns_lshl_b32 s86, s80, 12")
    A("v_and_b32 v50, 7, v0\nv_lshlrev_b32 v50, 7, v50\ns_lshr_b32 s87, s80, 3\ns_lshl_b32 s87, s87, 2\ns_add_u32 s87, s87, s3\ns_lshl_b32 s87, s87, 3\ns_and_b32 s7, s80, 7\ns_add_u32 s87, s87, s7\ns_lshl_b32 s87, s87, 10")
    A(f"buffer_load_dword v51, v50, {KC}, s87 offen"); g.vmop("pf")
    run(chunk_dmas(1))
    A("v_lshrrev_b32 v25, 4, v0\nv_lshlrev_b32 v25, 21, v25\nv_bfe_u32 v41, v0, 2, 2\nv_lshl_add_u32 v25, v41, 11, v25\nv_and_b32 v41, 3, v0\nv_lshl_add_u32 v25, v41, 7, v25")
    A("s_lshl_b32 s84, s80, 13\ns_lshl_b32 s7, s3, 9\ns_add_u32 s84, s84, s7\ns_add_u32 s85, s84, 0x100000\ns_lshr_b32 s88, %s, %d\ns_and_b32 s88, s88, %d\ns_lshr_b32 s89, %s, %d\ns_and_b32 s89, s89, %d" % ("s80" if pw else "s4", sh1, stag - 1, "s80" if pw else "s4", sh2, stag2 - 1))
    A("v_bfe_u32 v46, v0, 4, 1\nv_lshlrev_b32 v46, 13, v46\nv_and_b32 v47, 15, v0\nv_lshl_add_u32 v46, v47, 7, v46\nv_lshlrev_b32 v47, 11, v47")
    A("s_lshl_b32 s7, s4, 14\ns_lshl_b32 s94, s3, 11\ns_add_u32 s7, s7, s94\nv_add_u32 v46, s7, v46\ns_lshl_b32 s7, s4, 15\nv_add_u32 v47, s7, v47")
    def touchA(c, w):
        def f():
            lab[0] += 1
            A(f"s_cmp_lg_u32 s6, {w}\ns_cbranch_scc1 L_pf{lab[0]}\ns_mov_b32 s94, {c << 19}\nbuffer_load_dword v55, v46, {WQ}, s94 offen\nbuffer_load_dword v56, v47, {X}, 0 offen offset:{c*128}\nL_pf{lab[0]}:")
        return f
    lab = [0]
    def cpf(k, slot):
        def f():
            lab[0] += 1
            A(f"s_cmp_lg_u32 s{88+k}, {slot}\ns_cbranch_scc1 L_pf{lab[0]}\nbuffer_load_dword v{22+k}, v25, {WO}, s{84+k} offen\nL_pf{lab[0]}:")
        return f
    A("s_lshl_b32 s43, s3, 2\ns_add_u32 s43, s43, s40")
    A("v_lshrrev_b32 v1, 4, v0\nv_and_b32 v10, 15, v0\nv_xor_b32 v10, v10, v1\nv_lshlrev_b32 v10, 4, v10\nv_lshl_add_u32 v10, v1, 8, v10\nv_xor_b32 v11, 64, v10\nv_xor_b32 v12, 128, v10\nv_xor_b32 v13, 192, v10")
    A("s_lshl_b32 s52, s42, 2\ns_add_u32 s52, s52, s3\ns_lshl_b32 s52, s52, 13")
    A("s_lshr_b32 s81, s6, 1\ns_lshl_b32 s53, s44, 3\ns_add_u32 s53, s53, s6\ns_lshl_b32 s53, s53, 13\ns_lshl_b32 s7, s81, 15\ns_add_u32 s53, s53, s7\ns_xor_b32 s54, s53, 0x8000")
    A("v_and_b32 v1, 31, v0\nv_lshrrev_b32 v42, 5, v0\nv_bfe_u32 v14, v0, 1, 3\nv_xor_b32 v14, v14, v42\nv_lshlrev_b32 v14, 4, v14\nv_lshl_add_u32 v14, v1, 7, v14\nv_add_u32 v14, s47, v14")
    A("v_xor_b32 v15, 32, v14\nv_xor_b32 v16, 64, v14\nv_xor_b32 v17, 96, v14")
    A("v_bfe_u32 v43, v0, 2, 2\nv_lshl_add_u32 v18, v42, 3, v43\nv_lshlrev_b32 v18, 8, v18\nv_lshl_add_u32 v18, v43, 6, v18")
    A("v_bfe_u32 v44, v0, 4, 1\nv_lshl_add_u32 v18, v44, 5, v18\nv_and_b32 v45, 1, v0\nv_lshl_add_u32 v18, v45, 4, v18\nv_bfe_u32 v45, v0, 1, 1\nv_lshl_add_u32 v18, v45, 3, v18\nv_add_u32 v18, 0x4000, v18")
    A("v_xor_b32 v19, 64, v18\nv_xor_b32 v20, 128, v18\nv_xor_b32 v21, 192, v18")
    for k in range(8): A(f"v_add_u32 v{32+k}, 0x10000, v{14+k}")
    A("v_lshl_add_u32 v26, v42, 3, v43\nv_lshlrev_b32 v26, 7, v26\nv_lshrrev_b32 v45, 1, v43\nv_lshl_add_u32 v26, v45, 6, v26\nv_lshl_add_u32 v26, v44, 5, v26\nv_and_b32 v45, 3, v0\nv_lshl_add_u32 v26, v45, 3, v26\nv_add_u32 v26, s48, v26")
    A("s_and_b32 s7, s6, 1\ns_lshl_b32 s7, s7, 6\nv_xor_b32 v26, s7, v26\nv_xor_b32 v27, 64, v26")
    A("v_and_b32 v45, 15, v0\nv_xor_b32 v45, v45, v42\nv_lshlrev_b32 v45, 4, v45\nv_lshl_add_u32 v28, v1, 8, v45\nv_add_u32 v28, s48, v28\nv_add_u32 v24, 0x20000, v28")
    A("v_lshrrev_b32 v45, 3, v0\nv_lshlrev_b32 v30, 2, v44\nv_and_b32 v29, 7, v0\nv_xor_b32 v30, v30, v29\nv_lshlrev_b32 v30, 4, v30\nv_lshl_add_u32 v30, v45, 11, v30")
    A("s_lshl_b32 s7, s43, 7\ns_lshl_b32 s45, s6, 21\ns_add_u32 s7, s7, s45\nv_add_u32 v30, s7, v30\nv_lshlrev_b32 v31, 4, v0")
    A("s_mov_b32 s55, s40\ns_lshl_b32 s56, s55, 1" if rotB == 5 else "s_mov_b32 s55, 0\ns_mov_b32 s56, 0")
    def piece_off(u): return ((u + 2) % 5) * 32768
    WA = ["v30", "v2", "v3", "v4"]
    def wo_dmas(u):
        l = []
        for j in range(8):
            pre = None
            if j == 0: pre = f"s_add_u32 m0, s48, {hex(piece_off(u))}\ns_or_b32 s49, s56, {u & 8}\ns_lshl_b32 s49, s49, 17\ns_add_u32 s56, s56, 1\ns_and_b32 s56, s56, 7"
            if j == 4: pre = f"s_add_u32 m0, s48, {hex(piece_off(u)+4096)}\ns_add_u32 s49, s49, 0x10000"
            l.append(dma(WA[j & 3], WO, "s49", j & 3, f"w{u}", pre))
        return l
    def tile_reads(areg, base, off):
        return [f"v_xor_b32 v29, {32*j}, {base}\nds_read_b128 a[{areg+4*j}:{areg+4*j+3}], v29 offset:{off}" for j in range(8)]
    def chunk_reads(i):
        s = i & 3; b = (i & 1) * 80; l = []
        for ks in range(4):
            r = b + ks * 20
            l.append(f"ds_read_b128 a[{r}:{r+3}], v{(14 if s < 2 else 32)+ks} offset:{(s&1)*32768}")
            for blk in range(4):
                for rd in range(2):
                    q = r + 4 + blk * 4 + rd * 2
                    l.append(f"ds_read_b64_tr_b16 a[{q}:{q+1}], v{(18 if s < 2 else 36)+blk} offset:{(s&1)*32768 + (ks*16+rd*4)*256}")
        return l
    def chunk_mfma(i):
        b = (i & 1) * 80; l = []
        for ks in range(4):
            r = b + ks * 20
            for blk in range(4):
                d = 128 + blk * 16; c = "0" if (i == 0 and ks == 0) else f"v[{d}:{d+15}]"
                l.append(f"v_mfma_f32_32x32x16_bf16 v[{d}:{d+15}], a[{r+4+blk*4}:{r+7+blk*4}], a[{r}:{r+3}], {c}")
        return l
    def vmi(t, tag):
        def f(): A(t); g.vmop(tag)
        return f
    if tA:
        for c in range(tA, 3 + tD): run([touchA(c, c & 3)])
    g.vmwait("c0"); A("s_barrier"); stamp(1); run(merge(chunk_reads(0), chunk_dmas(2)))
    for i in range(16):
        A("s_waitcnt lgkmcnt(0)")
        if i == 5:
            A(f"s_mov_b32 s45, 0\nL_nonce:\nv_readfirstlane_b32 s90, v54\ns_cmp_lg_u32 s90, 0\ns_cbranch_scc1 L_nonced\ns_add_u32 s45, s45, 1\ns_cmp_ge_u32 s45, 0x200000\ns_cbranch_scc1 L_nonced\ns_sleep 2\nbuffer_load_dword v54, v53, {DBG}, 0 offen sc1\ns_waitcnt vmcnt(0)\ns_branch L_nonce\nL_nonced:")
        rd = []
        if i < 15: g.vmwait(f"c{i+1}"); rd = chunk_reads(i + 1)
        A("s_barrier")
        if sp >= 0 and 1 <= i - sp + 1 <= 7: stamp(i - sp + 1, True)
        if i < 13: dm = chunk_dmas(i + 3)
        elif i == 13: dm = tile_dmas(VC, "s53", "V0", 0) + ["v_add_u32 v2, 0x3c00, v30\nv_add_u32 v3, 0x7800, v30\nv_add_u32 v4, 0xb400, v30"]
        elif i == 14: dm = tile_dmas(VC, "s54", "V1", 1)
        else: dm = wo_dmas(0)
        if i == 1: dm = [vmi(f"buffer_load_dword v54, v53, {DBG}, 0 offen", "nonce")] + dm
        if i == vpf: dm = dm + [vmi(f"buffer_load_dword v52, v49, {VC}, s86 offen", "pf")]
        if tA and tA <= i + 3 + tD < 16: dm = dm[:4] + [touchA(i + 3 + tD, (i + 3 + tD) & 3)] + dm[4:]
        if i == 3: dm = tile_dmas(KC, "s52", "K", 4) + dm
        if i == 6: rd = rd + tile_reads(160, "v24", 0)
        if i == 15: g.vmwait("V0"); rd = tile_reads(192, "v28", 0)
        if pfB <= i < pfB + stag * st1 and (i - pfB) % st1 == 0: dm = dm + [cpf(0, (i - pfB) // st1)]
        if pfB2 <= i < pfB2 + stag2 * st2 and (i - pfB2) % st2 == 0: dm = dm + [cpf(1, (i - pfB2) // st2)]
        sched(g, chunk_mfma(i), [(dm, 0, DA), (rd, 0, F + 1)])
    stamp(2)
    def wo_reads(u):
        b = (u & 1) * 32; l = []; po = piece_off(u)
        for ks in range(4):
            for cb in range(2):
                for rd in range(2):
                    q = b + (ks * 2 + cb) * 4 + rd * 2
                    l.append(f"ds_read_b64_tr_b16 a[{q}:{q+1}], v{[26,14,16][po>>16]+cb} offset:{(po & 65535) + (ks*16+rd*4)*128}")
        return l
    ed = []
    for q in range(1, LB): ed += wo_dmas(q)
    E = ["v_add_u32 v14, 0x10000, v26", "v_add_u32 v15, 0x10000, v27", "v_add_u32 v16, 0x20000, v26", "v_add_u32 v17, 0x20000, v27", "s_mov_b32 s82, 0x3e0293ee",
         "s_lshl_b32 s45, s5, 4\ns_add_u32 s45, s45, s42\ns_lshl_b32 s45, s45, 5\ns_add_u32 s45, s45, s41\ns_lshl_b32 s45, s45, 11\ns_nop 1"]
    for k in range(8):
        E += [f"v_cvt_pk_bf16_f32 v{192+4*k+q}, v{128+8*k+2*q}, v{129+8*k+2*q}" for q in range(4)]
        if k: E.append(f"v_mfma_f32_32x32x16_bf16 v[224:239], a[{156+4*k}:{159+4*k}], v[{188+4*k}:{191+4*k}], " + ("0" if k == 1 else "v[224:239]"))
    E.append("s_nop 0\nv_mfma_f32_32x32x16_bf16 v[224:239], a[188:191], v[220:223], v[224:239]")
    E.append(lambda: g.vmwait("V1")); E += tile_reads(224, "v28", 32768)
    E.append("v_max3_f32 v240, v224, v225, v226")
    E += [f"v_max3_f32 v240, v240, v{k}, v{k+1}" for k in range(227, 239, 2)]
    E.append("v_max_f32 v240, v240, v239\nv_mov_b32 v241, v240\ns_nop 1\nv_permlane32_swap_b32 v240, v241\ns_nop 1\nv_max_f32 v240, v240, v241\nv_mul_f32 v240, s82, v240")
    E += [f"v_fma_f32 v{224+k}, v{224+k}, s82, -v240" for k in range(16)]
    E += [f"v_exp_f32 v{224+k}, v{224+k}" for k in range(16)]
    E.append("v_add_f32 v240, v224, v225\nv_add_f32 v241, v226, v227")
    E += [f"v_add_f32 v240, v240, v{k}\nv_add_f32 v241, v241, v{k+1}" for k in range(228, 240, 2)]
    E.append("v_add_f32 v240, v240, v241\nv_mov_b32 v241, v240\ns_nop 1\nv_permlane32_swap_b32 v240, v241\ns_nop 1\nv_add_f32 v240, v240, v241\nv_rcp_f32 v240, v240\ns_nop 0")
    E += [f"v_mul_f32 v{224+k}, v{224+k}, v240" for k in range(16)]
    E += [f"v_cvt_pk_bf16_f32 v{240+k}, v{224+2*k}, v{225+2*k}" for k in range(8)]
    sched(g, E, [(ed, 0, len(E) - ED)])
    A(f"buffer_store_dwordx4 v[240:243], v31, {WS}, s45 offen sc1"); g.vmop("P")
    A(f"buffer_store_dwordx4 v[244:247], v31, {WS}, s45 offen offset:1024 sc1"); g.vmop("P")
    g.vmwait("w0"); run(wo_reads(0))
    stamp(3)
    A("s_lshl_b32 s57, s5, 2\ns_add_u32 s57, s57, s40\ns_lshl_b32 s57, s57, 2\ns_add_u32 s57, s57, s3\ns_lshl_b32 s57, s57, 6\ns_add_u32 s57, s57, s44\ns_lshl_b32 s57, s57, 2\ns_add_u32 s57, s57, 0x400000")
    A("s_lshl_b32 s58, s5, 2\ns_lshr_b32 s7, s44, 1\ns_add_u32 s58, s58, s7\ns_lshl_b32 s58, s58, 2\ns_add_u32 s58, s58, s6\ns_lshl_b32 s58, s58, 8\ns_add_u32 s58, s58, 0x400000")
    A("s_lshl_b32 s59, s5, 3\ns_add_u32 s59, s59, s44\ns_lshl_b32 s59, s59, 3\ns_add_u32 s59, s59, s6\ns_lshl_b32 s59, s59, 14\ns_lshl_b32 s7, s81, 16\ns_add_u32 s59, s59, s7")
    if wflag:
        A("s_lshl_b32 s57, s5, 3\ns_lshr_b32 s7, s42, 1\ns_add_u32 s57, s57, s7\ns_lshl_b32 s57, s57, 2\ns_add_u32 s57, s57, s3\ns_lshl_b32 s57, s57, 6\ns_and_b32 s7, s42, 1\ns_lshl_b32 s7, s7, 3\ns_add_u32 s57, s57, s7\ns_add_u32 s57, s57, s44\ns_lshl_b32 s57, s57, 2\ns_add_u32 s57, s57, 0x400000")
        A("s_lshl_b32 s58, s5, 3\ns_add_u32 s58, s58, s44\ns_lshl_b32 s58, s58, 2\ns_add_u32 s58, s58, s6\ns_lshl_b32 s58, s58, 8\ns_add_u32 s58, s58, 0x400000")
    A(f"v_mov_b32 v1, 0\nv_mov_b32 v5, s90\nv_and_b32 v7, {15 if wflag else 7}, v0\nv_lshlrev_b32 v7, 2, v7")
    def p_loads(h):
        b = 64 + (h & 3) * 16; l = []
        for bb in range(2):
            for j in range(2):
                r = b + (bb * 2 + j) * 4
                pre = f"s_or_b32 s50, s55, {h & 4}\ns_lshl_b32 s50, s50, 11\ns_add_u32 s50, s50, s59\ns_xor_b32 s51, s50, 0x10000\ns_add_u32 s55, s55, 1\ns_and_b32 s55, s55, 3\n" if bb + j == 0 else ""
                l.append(vmi(pre + f"buffer_load_dwordx4 a[{r}:{r+3}], v31, {WS}, {'s51' if bb else 's50'} offen offset:{j*1024} sc1", f"p{h}"))
        return l
    def vw_mfma(u):
        b = (u & 1) * 32; h = u >> 1; l = []
        for ks in range(4):
            kk = (u & 1) * 4 + ks
            for bb in range(2):
                for cb in range(2):
                    d = 128 + (h & 1) * 64 + (bb * 2 + cb) * 16; c = "0" if kk == 0 else f"v[{d}:{d+15}]"
                    va = 192 + bb * 32 + kk * 4; wa = b + (ks * 2 + cb) * 4
                    l.append(f"v_mfma_f32_32x32x16_bf16 v[{d}:{d+15}], a[{va}:{va+3}], a[{wa}:{wa+3}], {c}")
        return l
    def cvts(h): return [f"v_cvt_pk_bf16_f32 v{32+(h%3)*32+k}, v{128+(h&1)*64+2*k}, v{129+(h&1)*64+2*k}" for k in range(32)]
    def om(h, blk, j):
        d = 128 + blk * 16; c = "0" if (h == 0 and j == 0) else f"a[{d}:{d+15}]"
        w = 32 + (h % 3) * 32 + (blk * 2 + j) * 4; p = 64 + (h & 3) * 16 + ((blk >> 1) * 2 + j) * 4
        return f"v_mfma_f32_32x32x16_bf16 a[{d}:{d+15}], v[{w}:{w+3}], a[{p}:{p+3}], {c}"
    outsched = {7: [0], 8: [1], 9: [2], 10: [3], 11: [4], 13: [5], 15: [6]}
    psched = {5: [0, 1], 6: [2], 7: [3], 8: [4], 9: [5], 10: [6], 11: [7]}
    if early == 1:
        pollu = 3; outsched = {6: [0], 7: [1], 8: [2], 9: [3], 11: [4], 13: [5], 15: [6]}; psched = {4: [0, 1], 5: [2], 6: [3], 7: [4], 8: [5], 10: [6], 12: [7]}
    if early == 2:
        pollu = 2; outsched = {5: [0], 6: [1], 7: [2], 9: [3], 11: [4], 13: [5], 15: [6]}; psched = {3: [0, 1], 4: [2], 6: [3], 8: [4], 10: [5], 12: [6], 13: [7]}
    if pollu == 5: psched = {6: [0, 1, 2], 7: [3], 8: [4], 9: [5], 10: [6], 11: [7]}
    for u in range(16):
        A("s_waitcnt lgkmcnt(0)")
        if u == 1 and not wflag:
            g.vmwait("P"); A("s_barrier\ns_cmp_lg_u32 s6, 0\ns_cbranch_scc1 L_nosig\ns_mov_b64 exec, 1")
            A(f"buffer_store_dword v5, v1, {WS}, s57 offen sc1\ns_mov_b64 exec, -1\nL_nosig:"); stamp(4)
        if u == pollu: A(f"buffer_load_dword v6, v7, {WS}, s58 offen sc1"); g.vmop("poll")
        if u == pollu + 1:
            g.vmwait("poll"); A("s_mov_b32 s45, 0\nL_poll:\nv_cmp_ne_u32 vcc, v5, v6\ns_nop 4\ns_cbranch_vccz L_polled\ns_add_u32 s45, s45, 1\ns_cmp_ge_u32 s45, 0x200000\ns_cbranch_scc1 L_polled\ns_sleep 1")
            A(f"buffer_load_dword v6, v7, {WS}, s58 offen sc1\ns_waitcnt vmcnt(0)\ns_branch L_poll\nL_polled:"); stamp(5)
        rd = []
        if u < 15: g.vmwait(f"w{u+1}"); rd = wo_reads(u + 1)
        if sp >= 0 and 1 <= u + 16 - sp + 1 <= 7: stamp(u + 16 - sp + 1, True)
        dm = []
        for h in psched.get(u, []): dm += p_loads(h)
        if u + LB < 16: dm += wo_dmas(u + LB)
        if pfB2 <= u + 16 < pfB2 + stag2 * st2 and (u + 16 - pfB2) % st2 == 0: dm = dm + [cpf(1, (u + 16 - pfB2) // st2)]
        cv = cvts(u // 2 - 1)[(u & 1) * 16:(u & 1) * 16 + 16] if u >= 2 else []
        mf = vw_mfma(u)
        for h in outsched.get(u, []):
            o = [om(h, blk, j) for j in range(2) for blk in range(4)]
            def w(h=h, m=o[0]): g.vmwait(f"p{h}"); A(m)
            mf = mf + [w] + o[1:]
        if u == 15:
            dm = ["v_add_u32 v8, s48, v31", "v_and_b32 v1, 31, v0\nv_lshrrev_b32 v9, 5, v0\nv_lshlrev_b32 v9, 4, v9\nv_lshl_add_u32 v9, v1, 12, v9",
                  "s_lshl_b32 s7, s44, 1\ns_add_u32 s7, s7, s81\ns_lshl_b32 s7, s7, 17\ns_lshl_b32 s45, s5, 11\ns_add_u32 s7, s7, s45\ns_lshl_b32 s45, s43, 7\ns_add_u32 s7, s7, s45\ns_and_b32 s45, s6, 1\ns_lshl_b32 s45, s45, 6\ns_add_u32 s7, s7, s45"]
            dm += [f"v_xor_b32 v{9+k}, {hex(k*8192)}, v8" for k in (1, 2, 3)]
        if u == 0 and wflag:
            def fl(m=mf[wflag]):
                A(m); g.vmwait("P"); A(f"s_mov_b64 exec, 1\nbuffer_store_dword v5, v1, {WS}, s57 offen sc1\ns_mov_b64 exec, -1"); g.vmop("flag"); stamp(4)
            mf[wflag] = fl
        sched(g, mf, [(dm, 0, min(DB, len(mf))), (rd, 0, F - 1), (cv, 5 if u % 2 == 0 else 0, 14)])
    A("s_nop 3"); g.vmwait("p7")
    cv = cvts(7); wr = []
    boff = {1: 0, 2: 4096, 3: 32768}
    for n, blk in enumerate((1, 2, 3, 0)):
        run(cv[blk * 8:blk * 8 + 8]); A("s_nop 0"); run(wr); A(om(7, blk, 0)); A(om(7, blk, 1))
        wr = []
        if n >= 1:
            pb = (1, 2, 3, 0)[n - 1]
            wr = [f"ds_write_b128 v8, a[{128+pb*16+4*a}:{131+pb*16+4*a}] offset:{boff[pb]+a*1024}" for a in range(4)]
    stamp(6)
    A("s_nop 1"); run(wr); A("s_nop 7")
    for k in range(16): A(f"v_accvgpr_read_b32 v{32+k}, a{128+k}")
    A("s_waitcnt lgkmcnt(0)\ns_barrier")
    for a in range(4):
        for k in (1, 2, 3): A(f"ds_read_b128 v[{32+16*k+4*a}:{35+16*k+4*a}], v{9+k} offset:{boff[k]+a*1024}")
    for a in range(4):
        A(f"s_waitcnt lgkmcnt({9-3*a})")
        for q in range(4 * a, 4 * a + 4): A(f"v_add_f32 v{32+q}, v{32+q}, v{48+q}\nv_add_f32 v{64+q}, v{64+q}, v{80+q}")
        for q in range(4 * a, 4 * a + 4): A(f"v_add_f32 v{32+q}, v{32+q}, v{64+q}")
        for q in range(2): A(f"v_cvt_pk_bf16_f32 v{96+2*a+q}, v{32+4*a+2*q}, v{33+4*a+2*q}")
        if a & 1:
            r = 96 + 2 * (a - 1)
            A(f"s_nop 1\nv_permlane32_swap_b32 v{r}, v{r+2}\nv_permlane32_swap_b32 v{r+1}, v{r+3}\nbuffer_store_dwordx4 v[{r}:{r+3}], v9, {OUT}, s7 offen offset:{16*(a-1)}")
    if stamps:
        A("s_waitcnt vmcnt(0)"); stamp(7); A(f"s_waitcnt lgkmcnt(0)\ns_sub_u32 s76, s78, s76\ns_sub_u32 s78, s{60+2*c1}, s{60+2*c0}\ns_mov_b32 s77, 0\ns_mov_b32 s79, 0\ns_cmp_lg_u32 s6, 0\ns_cbranch_scc1 L_end\ns_lshl_b32 s3, s2, 7\ns_add_u32 s3, s3, 0x8000000\nv_mov_b32 v1, 0\ns_mov_b64 exec, 1")
        for k in range(5):
            for q in range(4): A(f"v_mov_b32 v{4+q}, s{60+4*k+q}")
            A(f"buffer_store_dwordx4 v[4:7], v1, {WS}, s3 offen offset:{16*k}\ns_nop 1")
    A("L_end:\ns_endpgm")
    A('.section .rodata,"a"\n.p2align 6\n.amdhsa_kernel %s_kernel\n  .amdhsa_next_free_vgpr 512\n  .amdhsa_next_free_sgpr 96\n  .amdhsa_accum_offset 256\n  .amdhsa_group_segment_fixed_size 0\n  .amdhsa_kernarg_size 104\n  .amdhsa_user_sgpr_count 2\n  .amdhsa_user_sgpr_kernarg_segment_ptr 1\n  .amdhsa_system_sgpr_workgroup_id_x 1\n.end_amdhsa_kernel' % NAME)
    T = "\n".join(g.L).split("\n")
    if "m" in kill: T = [t for t in T if not t.startswith("v_mfma")]
    if "d" in kill: T = [t for t in T if not t.rstrip().endswith("lds")]
    if "r" in kill: T = [t for t in T if not t.startswith("ds_read_b64_tr") and not t.startswith("ds_read_b128 a")]
    open(fn, "w").write("\n".join(T) + "\n")
if __name__ == "__main__":
    kw = {}
    for a in sys.argv[2:]:
        k, v = a.split("="); kw[k] = int(v) if v.lstrip("-").isdigit() else v
    gen(sys.argv[1], **kw)
```

```python
import sys
from gen import G, sched, merge, NAME
def gen(fn, stamps=0, kill="", pfB=5, pfB2=13, stag=8, F=11, LB=3, c0=0, c1=7, pollu=4, pfP=0, rotB=5, sp=-1, DA=16, DB=99, vpf=1, early=0, xs=0, st1=1, st2=1, stag2=8, wflag=0, ED=30, sh1=0, sh2=0, pw=0, tA=0, tD=4, m16=0, R2=20, C2=28, a16=0, RA=24):
    g = G(); A = g.A
    def stamp(i, force=False):
        if sp >= 0 and 1 <= i <= 7 and not force: return
        if stamps:
            A(f"s_memrealtime s[{60+2*i}:{61+2*i}]")
            if i == c0: A("s_memtime s[76:77]")
            if i == c1: A("s_memtime s[78:79]")
    def run(l):
        for o in l:
            if callable(o): o()
            else: A(o)
    A("; @launch grid=(256,1,1) block=(256,1,1) lds=163840")
    A('.amdgcn_target "amdgcn-amd-amdhsa--gfx950"\n.text\n.globl %s_kernel\n.p2align 8\n.type %s_kernel,@function\n%s_kernel:' % (NAME, NAME, NAME))
    A("s_cmp_ge_u32 s2, 256\ns_cbranch_scc1 L_end")
    A("s_bfe_u32 s5, s2, 0x10002\ns_mul_i32 s7, s5, 40\ns_add_u32 s92, s0, s7\ns_addc_u32 s93, s1, 0")
    A("s_load_dwordx2 s[8:9], s[92:93], 0\ns_load_dwordx2 s[12:13], s[92:93], 24\ns_load_dwordx2 s[16:17], s[92:93], 32\ns_load_dwordx2 s[20:21], s[92:93], 8\ns_load_dwordx2 s[24:25], s[92:93], 16")
    A("s_load_dwordx2 s[28:29], s[0:1], 80\ns_load_dwordx2 s[32:33], s[0:1], 88\ns_load_dwordx2 s[36:37], s[0:1], 96\ns_memrealtime s[90:91]")
    stamp(0)
    A("v_lshrrev_b32 v1, 6, v0\nv_and_b32 v0, 63, v0\nv_readfirstlane_b32 s6, v1\ns_and_b32 s3, s2, 3\ns_lshr_b32 s4, s2, 3")
    for r, n in ((8, 0x100000), (12, 0x800000), (16, 0x800000), (20, 0x80000), (24, 0x80000), (28, 0x200000), (32, 256), (36, 0x10000000)):
        A(f"s_mov_b32 s{r+2}, {hex(n)}\ns_mov_b32 s{r+3}, 0x20000")
    X, WQ, WO, KC, VC, OUT, DBG, WS = ["s[%d:%d]" % (r, r + 3) for r in (8, 12, 16, 20, 24, 28, 32, 36)]
    A("s_and_b32 s40, s4, 3\ns_lshr_b32 s44, s4, 2\ns_lshl_b32 s41, s3, 3\ns_add_u32 s41, s41, s44\ns_lshl_b32 s42, s40, 2\ns_add_u32 s42, s42, s6")
    A("v_lshrrev_b32 v1, 3, v0\nv_lshrrev_b32 v6, 4, v0\nv_and_b32 v7, 7, v0\nv_xor_b32 v7, v7, v6\nv_lshlrev_b32 v7, 4, v7\nv_lshl_add_u32 v2, v1, 11, v7")
    A("s_lshl_b32 s7, s42, 16\nv_add_u32 v2, s7, v2\nv_xor_b32 v3, 64, v2\nv_add_u32 v5, 0xb400, v3\nv_add_u32 v3, 0x3c00, v3\nv_add_u32 v4, 0x7800, v2")
    A("v_lshlrev_b32 v1, 2, v6\nv_and_b32 v7, 15, v0\nv_xor_b32 v7, v7, v1\nv_lshlrev_b32 v7, 4, v7\nv_lshl_add_u32 v6, v6, 13, v7")
    A("s_lshl_b32 s7, s6, 17\ns_lshl_b32 s45, s41, 8\ns_add_u32 s7, s7, s45\nv_add_u32 v6, s7, v6\nv_add_u32 v7, 0x7c00, v6\n" + f"v_xor_b32 v9, {32*a16}, v6\nv_add_u32 v8, 0xf800, v9\nv_add_u32 v9, 0x17400, v9")
    A("s_add_u32 s46, s40, s44\ns_and_b32 s46, s46, 3\ns_lshl_b32 s47, s6, 12\ns_lshl_b32 s48, s6, 13")
    def dma(v, srd, soff, j, tag, pre=None):
        def f():
            if pre: A(pre)
            A(f"buffer_load_dwordx4 {v}, {srd}, {soff} offen offset:{j*1024} lds"); g.vmop(tag)
        return f
    def chunk_dmas(i):
        s = i & 3; l = []
        for j in range(4): l.append(dma(f"v{6+j}", WQ, "s50", j, f"c{i}", None if j else f"s_add_u32 m0, s47, {hex(s*32768+16384)}\n" + (f"s_or_b32 s49, s46, {i & 12}" if (i < tA or not tA) else f"s_mov_b32 s49, {i}") + "\ns_lshl_b32 s50, s49, 19"))
        for j in range(4): l.append(dma(f"v{2+j}", X, "s49", j, f"c{i}", None if j else f"s_add_u32 m0, s47, {hex(s*32768)}\ns_lshl_b32 s49, s49, 7\ns_add_u32 s46, s46, 1\ns_and_b32 s46, s46, 3"))
        return l
    def tile_dmas(srd, sreg, tag, piece):
        return [dma(f"v{10+(j&3)}", srd, "s51", j & 3, tag, None if j & 3 else f"s_add_u32 m0, s48, {hex(piece*32768+j*1024)}\ns_add_u32 s51, {sreg}, {j*1024}") for j in range(8)]
    A("s_waitcnt lgkmcnt(0)")
    run(chunk_dmas(0))
    A(f"v_mov_b32 v53, 0\ns_or_b32 s7, s2, s6\ns_cmp_lg_u32 s7, 0\ns_cbranch_scc1 L_nonon\ns_or_b32 s90, s90, 1\nv_mov_b32 v54, s90\ns_mov_b64 exec, 1\nbuffer_store_dword v54, v53, {DBG}, 0 offen sc1\ns_mov_b64 exec, -1\nL_nonon:")
    A("s_lshl_b32 s80, s4, 2\ns_add_u32 s80, s80, s6\nv_and_b32 v49, 31, v0\nv_lshlrev_b32 v49, 7, v49\ns_lshl_b32 s86, s80, 12")
    A("v_and_b32 v50, 7, v0\nv_lshlrev_b32 v50, 7, v50\ns_lshr_b32 s87, s80, 3\ns_lshl_b32 s87, s87, 2\ns_add_u32 s87, s87, s3\ns_lshl_b32 s87, s87, 3\ns_and_b32 s7, s80, 7\ns_add_u32 s87, s87, s7\ns_lshl_b32 s87, s87, 10")
    A(f"buffer_load_dword v51, v50, {KC}, s87 offen"); g.vmop("pf")
    run(chunk_dmas(1))
    A("v_lshrrev_b32 v25, 4, v0\nv_lshlrev_b32 v25, 21, v25\nv_bfe_u32 v41, v0, 2, 2\nv_lshl_add_u32 v25, v41, 11, v25\nv_and_b32 v41, 3, v0\nv_lshl_add_u32 v25, v41, 7, v25")
    A("s_lshl_b32 s84, s80, 13\ns_lshl_b32 s7, s3, 9\ns_add_u32 s84, s84, s7\ns_add_u32 s85, s84, 0x100000\ns_lshr_b32 s88, %s, %d\ns_and_b32 s88, s88, %d\ns_lshr_b32 s89, %s, %d\ns_and_b32 s89, s89, %d" % ("s80" if pw else "s4", sh1, stag - 1, "s80" if pw else "s4", sh2, stag2 - 1))
    A("v_bfe_u32 v46, v0, 4, 1\nv_lshlrev_b32 v46, 13, v46\nv_and_b32 v47, 15, v0\nv_lshl_add_u32 v46, v47, 7, v46\nv_lshlrev_b32 v47, 11, v47")
    A("s_lshl_b32 s7, s4, 14\ns_lshl_b32 s94, s3, 11\ns_add_u32 s7, s7, s94\nv_add_u32 v46, s7, v46\ns_lshl_b32 s7, s4, 15\nv_add_u32 v47, s7, v47")
    def touchA(c, w):
        def f():
            lab[0] += 1
            A(f"s_cmp_lg_u32 s6, {w}\ns_cbranch_scc1 L_pf{lab[0]}\ns_mov_b32 s94, {c << 19}\nbuffer_load_dword v55, v46, {WQ}, s94 offen\nbuffer_load_dword v56, v47, {X}, 0 offen offset:{c*128}\nL_pf{lab[0]}:")
        return f
    lab = [0]
    def cpf(k, slot):
        def f():
            lab[0] += 1
            A(f"s_cmp_lg_u32 s{88+k}, {slot}\ns_cbranch_scc1 L_pf{lab[0]}\nbuffer_load_dword v{22+k}, v25, {WO}, s{84+k} offen\nL_pf{lab[0]}:")
        return f
    A("s_lshl_b32 s43, s3, 2\ns_add_u32 s43, s43, s40")
    A("v_lshrrev_b32 v1, 4, v0\nv_and_b32 v10, 15, v0\nv_xor_b32 v10, v10, v1\nv_lshlrev_b32 v10, 4, v10\nv_lshl_add_u32 v10, v1, 8, v10\nv_xor_b32 v11, 64, v10\nv_xor_b32 v12, 128, v10\nv_xor_b32 v13, 192, v10")
    A("s_lshl_b32 s52, s42, 2\ns_add_u32 s52, s52, s3\ns_lshl_b32 s52, s52, 13")
    A("s_lshr_b32 s81, s6, 1\ns_lshl_b32 s53, s44, 3\ns_add_u32 s53, s53, s6\ns_lshl_b32 s53, s53, 13\ns_lshl_b32 s7, s81, 15\ns_add_u32 s53, s53, s7\ns_xor_b32 s54, s53, 0x8000")
    A("v_and_b32 v1, 31, v0\nv_lshrrev_b32 v42, 5, v0\nv_bfe_u32 v14, v0, 1, 3\nv_xor_b32 v14, v14, v42\nv_lshlrev_b32 v14, 4, v14\nv_lshl_add_u32 v14, v1, 7, v14\nv_add_u32 v14, s47, v14")
    if a16: A("v_lshrrev_b32 v45, 4, v0\nv_bfe_u32 v14, v0, 1, 3\nv_xor_b32 v14, v14, v45\nv_lshlrev_b32 v14, 4, v14\nv_and_b32 v45, 15, v0\nv_lshl_add_u32 v14, v45, 7, v14\nv_add_u32 v14, s47, v14")
    A("v_xor_b32 v15, 32, v14\nv_xor_b32 v16, 64, v14\nv_xor_b32 v17, 96, v14")
    A("v_bfe_u32 v43, v0, 2, 2\nv_lshl_add_u32 v18, v42, 3, v43\nv_lshlrev_b32 v18, 8, v18\nv_lshl_add_u32 v18, v43, 6, v18")
    A("v_bfe_u32 v44, v0, 4, 1\nv_lshl_add_u32 v18, v44, 5, v18\nv_and_b32 v45, 1, v0\nv_lshl_add_u32 v18, v45, 4, v18\nv_bfe_u32 v45, v0, 1, 1\nv_lshl_add_u32 v18, v45, 3, v18\nv_add_u32 v18, 0x4000, v18")
    if a16: A("v_lshrrev_b32 v45, 4, v0\nv_lshl_add_u32 v18, v45, 3, v43\nv_lshlrev_b32 v18, 8, v18\nv_lshl_add_u32 v18, v43, 6, v18\nv_lshl_add_u32 v18, v44, 5, v18\nv_and_b32 v45, 3, v0\nv_lshl_add_u32 v18, v45, 3, v18\nv_add_u32 v18, 0x4000, v18")
    if a16:
        for k in range(4): A(f"v_xor_b32 v{64+k}, {32+64*k}, v18\nv_add_u32 v{68+k}, 0x10000, v{64+k}")
    A("v_xor_b32 v19, 64, v18\nv_xor_b32 v20, 128, v18\nv_xor_b32 v21, 192, v18")
    for k in range(8): A(f"v_add_u32 v{32+k}, 0x10000, v{14+k}")
    if m16: A("v_lshrrev_b32 v45, 4, v0")
    A(f"v_lshl_add_u32 v26, {'v45' if m16 else 'v42'}, 3, v43\nv_lshlrev_b32 v26, 7, v26\nv_lshrrev_b32 v45, 1, v43\nv_lshl_add_u32 v26, v45, 6, v26\nv_lshl_add_u32 v26, v44, 5, v26\nv_and_b32 v45, 3, v0\nv_lshl_add_u32 v26, v45, 3, v26\nv_add_u32 v26, s48, v26")
    A("s_and_b32 s7, s6, 1\ns_lshl_b32 s7, s7, 6\nv_xor_b32 v26, s7, v26\nv_xor_b32 v27, 64, v26")
    A("v_and_b32 v45, 15, v0\nv_xor_b32 v45, v45, v42\nv_lshlrev_b32 v45, 4, v45\nv_lshl_add_u32 v28, v1, 8, v45\nv_add_u32 v28, s48, v28\nv_add_u32 v24, 0x20000, v28")
    if m16: A("v_and_b32 v28, 3, v0\nv_bfe_u32 v45, v0, 2, 1\nv_lshl_add_u32 v28, v45, 3, v28\nv_bfe_u32 v45, v0, 3, 1\nv_lshl_add_u32 v28, v45, 2, v28\nv_lshrrev_b32 v45, 4, v0\nv_xor_b32 v45, v45, v28\nv_lshlrev_b32 v45, 4, v45\nv_lshl_add_u32 v28, v28, 8, v45\nv_add_u32 v28, s48, v28")
    A("v_lshrrev_b32 v45, 3, v0\nv_lshlrev_b32 v30, 2, v44\nv_and_b32 v29, 7, v0\nv_xor_b32 v30, v30, v29\nv_lshlrev_b32 v30, 4, v30\nv_lshl_add_u32 v30, v45, 11, v30")
    A("s_lshl_b32 s7, s43, 7\ns_lshl_b32 s45, s6, 21\ns_add_u32 s7, s7, s45\nv_add_u32 v30, s7, v30\nv_lshlrev_b32 v31, 4, v0")
    A("s_mov_b32 s55, s40\ns_lshl_b32 s56, s55, 1" if rotB == 5 else "s_mov_b32 s55, 0\ns_mov_b32 s56, 0")
    def piece_off(u): return ((u + 2) % 5) * 32768
    WA = ["v30", "v2", "v3", "v4"]
    def wo_dmas(u):
        l = []
        for j in range(8):
            pre = None
            if j == 0: pre = f"s_add_u32 m0, s48, {hex(piece_off(u))}\ns_or_b32 s49, s56, {u & 8}\ns_lshl_b32 s49, s49, 17\ns_add_u32 s56, s56, 1\ns_and_b32 s56, s56, 7"
            if j == 4: pre = f"s_add_u32 m0, s48, {hex(piece_off(u)+4096)}\ns_add_u32 s49, s49, 0x10000"
            l.append(dma(WA[j & 3], WO, "s49", j & 3, f"w{u}", pre))
        return l
    def tile_reads(areg, base, off):
        return [f"v_xor_b32 v29, {32*j}, {base}\nds_read_b128 a[{areg+4*j}:{areg+4*j+3}], v29 offset:{off}" for j in range(8)]
    def v_reads(areg, off):
        if not m16: return tile_reads(areg, "v28", off)
        return [f"v_xor_b32 v29, {64*(j&3)}, v28\nds_read_b128 a[{areg+4*j}:{areg+4*j+3}], v29 offset:{off+(j>>2)*4096}" for j in range(8)]
    def chunk_reads(i):
        s = i & 3; b = (i & 1) * 80; l = []
        if a16:
            for ks in range(2):
                r = b + ks * 40
                for n in range(2): l.append(f"ds_read_b128 a[{r+4*n}:{r+4*n+3}], v{(14 if s < 2 else 32)+2*ks} offset:{(s&1)*32768+n*2048}")
                for mt in range(8):
                    for rd in range(2):
                        q = r + 8 + mt * 4 + rd * 2
                        l.append(f"ds_read_b64_tr_b16 a[{q}:{q+1}], v{((64 if s < 2 else 68) if mt & 1 else (18 if s < 2 else 36))+(mt>>1)} offset:{(s&1)*32768 + (ks*32+rd*4)*256}")
            return l
        for ks in range(4):
            r = b + ks * 20
            l.append(f"ds_read_b128 a[{r}:{r+3}], v{(14 if s < 2 else 32)+ks} offset:{(s&1)*32768}")
            for blk in range(4):
                for rd in range(2):
                    q = r + 4 + blk * 4 + rd * 2
                    l.append(f"ds_read_b64_tr_b16 a[{q}:{q+1}], v{(18 if s < 2 else 36)+blk} offset:{(s&1)*32768 + (ks*16+rd*4)*256}")
        return l
    def chunk_mfma(i):
        b = (i & 1) * 80; l = []
        if a16:
            for ks in range(2):
                r = b + ks * 40
                for mt in range(8):
                    for n in range(2):
                        d = 128 + mt * 8 + n * 4; c = "0" if (i == 0 and ks == 0) else f"v[{d}:{d+3}]"
                        l.append(f"v_mfma_f32_16x16x32_bf16 v[{d}:{d+3}], a[{r+8+mt*4}:{r+11+mt*4}], a[{r+4*n}:{r+4*n+3}], {c}")
            return l
        for ks in range(4):
            r = b + ks * 20
            for blk in range(4):
                d = 128 + blk * 16; c = "0" if (i == 0 and ks == 0) else f"v[{d}:{d+15}]"
                l.append(f"v_mfma_f32_32x32x16_bf16 v[{d}:{d+15}], a[{r+4+blk*4}:{r+7+blk*4}], a[{r}:{r+3}], {c}")
        return l
    def vmi(t, tag):
        def f(): A(t); g.vmop(tag)
        return f
    if tA:
        for c in range(tA, 3 + tD): run([touchA(c, c & 3)])
    g.vmwait("c0"); A("s_barrier"); stamp(1); run(merge(chunk_reads(0), chunk_dmas(2)))
    for i in range(16):
        A("s_waitcnt lgkmcnt(0)")
        if i == 5:
            A(f"s_mov_b32 s45, 0\nL_nonce:\nv_readfirstlane_b32 s90, v54\ns_cmp_lg_u32 s90, 0\ns_cbranch_scc1 L_nonced\ns_add_u32 s45, s45, 1\ns_cmp_ge_u32 s45, 0x200000\ns_cbranch_scc1 L_nonced\nbuffer_load_dword v54, v53, {DBG}, 0 offen sc1\ns_waitcnt vmcnt(0)\ns_branch L_nonce\nL_nonced:")
        rd = []
        if i < 15: g.vmwait(f"c{i+1}"); rd = chunk_reads(i + 1)
        A("s_barrier")
        if sp >= 0 and 1 <= i - sp + 1 <= 7: stamp(i - sp + 1, True)
        if i < 13: dm = chunk_dmas(i + 3)
        elif i == 13: dm = tile_dmas(VC, "s53", "V0", 0) + [f"v_xor_b32 v4, {32*m16}, v30\nv_add_u32 v2, 0x3c00, v4\nv_add_u32 v3, 0x7800, v30\nv_add_u32 v4, 0xb400, v4"]
        elif i == 14: dm = tile_dmas(VC, "s54", "V1", 1)
        else: dm = wo_dmas(0)
        if i == 1: dm = [vmi(f"buffer_load_dword v54, v53, {DBG}, 0 offen", "nonce")] + dm
        if i == vpf: dm = dm + [vmi(f"buffer_load_dword v52, v49, {VC}, s86 offen", "pf")]
        if tA and tA <= i + 3 + tD < 16: dm = dm[:4] + [touchA(i + 3 + tD, (i + 3 + tD) & 3)] + dm[4:]
        if i == 3: dm = tile_dmas(KC, "s52", "K", 4) + dm
        if i == 6: rd = rd + tile_reads(160, "v24", 0)
        if i == 15: g.vmwait("V0"); rd = v_reads(192, 0)
        if pfB <= i < pfB + stag * st1 and (i - pfB) % st1 == 0: dm = dm + [cpf(0, (i - pfB) // st1)]
        if pfB2 <= i < pfB2 + stag2 * st2 and (i - pfB2) % st2 == 0: dm = dm + [cpf(1, (i - pfB2) // st2)]
        sched(g, chunk_mfma(i), [(dm, 0, DA * (1 + a16)), (rd, 0, RA if a16 else F + 1)])
    stamp(2)
    def wo_reads(u):
        b = (u & 1) * 32; l = []; po = piece_off(u)
        if m16:
            for ks in range(2):
                for c in range(4):
                    for rd in range(2):
                        q = b + (ks * 4 + c) * 4 + rd * 2
                        l.append(f"ds_read_b64_tr_b16 a[{q}:{q+1}], v{([18,20,12] if c & 1 else [26,14,16])[po>>16]+(c>>1)} offset:{(po & 65535) + (ks*32+rd*4)*128}")
            return l
        for ks in range(4):
            for cb in range(2):
                for rd in range(2):
                    q = b + (ks * 2 + cb) * 4 + rd * 2
                    l.append(f"ds_read_b64_tr_b16 a[{q}:{q+1}], v{[26,14,16][po>>16]+cb} offset:{(po & 65535) + (ks*16+rd*4)*128}")
        return l
    ed = []
    for q in range(1, LB): ed += wo_dmas(q)
    E = ["v_add_u32 v14, 0x10000, v26", "v_add_u32 v15, 0x10000, v27", "v_add_u32 v16, 0x20000, v26", "v_add_u32 v17, 0x20000, v27" + ("\nv_xor_b32 v18, 32, v26\nv_xor_b32 v19, 32, v27\nv_xor_b32 v20, 32, v14\nv_xor_b32 v21, 32, v15\nv_xor_b32 v12, 32, v16\nv_xor_b32 v13, 32, v17" if m16 else ""), "s_mov_b32 s82, 0x3e0293ee",
         "s_lshl_b32 s45, s5, 4\ns_add_u32 s45, s45, s42\ns_lshl_b32 s45, s45, 5\ns_add_u32 s45, s45, s41\ns_lshl_b32 s45, s45, 11\ns_nop 1"]
    for k in range(8):
        E += [f"v_cvt_pk_bf16_f32 v{192+4*k+q}, v{128+8*k+2*q}, v{129+8*k+2*q}" for q in range(4)]
        if a16:
            sw = lambda k: f"v_permlane16_swap_b32 v{192+4*k}, v{194+4*k}\nv_permlane16_swap_b32 v{193+4*k}, v{195+4*k}"
            sm = lambda k: f"v_mfma_f32_32x32x16_bf16 v[224:239], a[{160+4*k}:{163+4*k}], v[{192+4*k}:{195+4*k}], " + ("0" if k == 0 else "v[224:239]")
            if k: E.append(sw(k - 1))
            if k > 1: E.append(sm(k - 2))
            if k == 7: E.append("s_nop 1\n" + sw(7) + "\n" + sm(6) + "\ns_nop 0")
        elif k: E.append(f"v_mfma_f32_32x32x16_bf16 v[224:239], a[{156+4*k}:{159+4*k}], v[{188+4*k}:{191+4*k}], " + ("0" if k == 1 else "v[224:239]"))
    E.append("s_nop 0\nv_mfma_f32_32x32x16_bf16 v[224:239], a[188:191], v[220:223], v[224:239]")
    E.append(lambda: g.vmwait("V1")); E += v_reads(224, 32768)
    E.append("v_max3_f32 v240, v224, v225, v226")
    E += [f"v_max3_f32 v240, v240, v{k}, v{k+1}" for k in range(227, 239, 2)]
    E.append("v_max_f32 v240, v240, v239\nv_mov_b32 v241, v240\ns_nop 1\nv_permlane32_swap_b32 v240, v241\ns_nop 1\nv_max_f32 v240, v240, v241\nv_mul_f32 v240, s82, v240")
    E += [f"v_fma_f32 v{224+k}, v{224+k}, s82, -v240" for k in range(16)]
    E += [f"v_exp_f32 v{224+k}, v{224+k}" for k in range(16)]
    E.append("v_add_f32 v240, v224, v225\nv_add_f32 v241, v226, v227")
    E += [f"v_add_f32 v240, v240, v{k}\nv_add_f32 v241, v241, v{k+1}" for k in range(228, 240, 2)]
    E.append("v_add_f32 v240, v240, v241\nv_mov_b32 v241, v240\ns_nop 1\nv_permlane32_swap_b32 v240, v241\ns_nop 1\nv_add_f32 v240, v240, v241\nv_rcp_f32 v240, v240\ns_nop 0")
    E += [f"v_mul_f32 v{224+k}, v{224+k}, v240" for k in range(16)]
    E += [f"v_cvt_pk_bf16_f32 v{240+k}, v{224+2*k}, v{225+2*k}" for k in range(8)]
    sched(g, E, [(ed, 0, len(E) - ED)])
    A(f"buffer_store_dwordx4 v[240:243], v31, {WS}, s45 offen sc1"); g.vmop("P")
    A(f"buffer_store_dwordx4 v[244:247], v31, {WS}, s45 offen offset:1024 sc1"); g.vmop("P")
    g.vmwait("w0"); run(wo_reads(0))
    stamp(3)
    A("s_lshl_b32 s57, s5, 2\ns_add_u32 s57, s57, s40\ns_lshl_b32 s57, s57, 2\ns_add_u32 s57, s57, s3\ns_lshl_b32 s57, s57, 6\ns_add_u32 s57, s57, s44\ns_lshl_b32 s57, s57, 2\ns_add_u32 s57, s57, 0x400000")
    A("s_lshl_b32 s58, s5, 2\ns_lshr_b32 s7, s44, 1\ns_add_u32 s58, s58, s7\ns_lshl_b32 s58, s58, 2\ns_add_u32 s58, s58, s6\ns_lshl_b32 s58, s58, 8\ns_add_u32 s58, s58, 0x400000")
    A("s_lshl_b32 s59, s5, 3\ns_add_u32 s59, s59, s44\ns_lshl_b32 s59, s59, 3\ns_add_u32 s59, s59, s6\ns_lshl_b32 s59, s59, 14\ns_lshl_b32 s7, s81, 16\ns_add_u32 s59, s59, s7")
    if wflag:
        A("s_lshl_b32 s57, s5, 3\ns_lshr_b32 s7, s42, 1\ns_add_u32 s57, s57, s7\ns_lshl_b32 s57, s57, 2\ns_add_u32 s57, s57, s3\ns_lshl_b32 s57, s57, 6\ns_and_b32 s7, s42, 1\ns_lshl_b32 s7, s7, 3\ns_add_u32 s57, s57, s7\ns_add_u32 s57, s57, s44\ns_lshl_b32 s57, s57, 2\ns_add_u32 s57, s57, 0x400000")
        A("s_lshl_b32 s58, s5, 3\ns_add_u32 s58, s58, s44\ns_lshl_b32 s58, s58, 2\ns_add_u32 s58, s58, s6\ns_lshl_b32 s58, s58, 8\ns_add_u32 s58, s58, 0x400000")
    A(f"v_mov_b32 v1, 0\nv_mov_b32 v5, s90\nv_and_b32 v7, {15 if wflag else 7}, v0\nv_lshlrev_b32 v7, 2, v7")
    def p_loads(h):
        b = 64 + (h & 3) * 16; l = []
        for bb in range(2):
            for j in range(2):
                r = b + (bb * 2 + j) * 4
                pre = f"s_or_b32 s50, s55, {h & 4}\ns_lshl_b32 s50, s50, 11\ns_add_u32 s50, s50, s59\ns_xor_b32 s51, s50, 0x10000\ns_add_u32 s55, s55, 1\ns_and_b32 s55, s55, 3\n" if bb + j == 0 else ""
                l.append(vmi(pre + f"buffer_load_dwordx4 a[{r}:{r+3}], v31, {WS}, {'s51' if bb else 's50'} offen offset:{j*1024} sc1", f"p{h}"))
        return l
    def vw_mfma(u):
        b = (u & 1) * 32; h = u >> 1; l = []
        if m16:
            for ks in range(2):
                kk = (u & 1) * 2 + ks
                for c in range(4):
                    for bb in range(2):
                        for mt in range(2):
                            d = 128 + (h & 1) * 64 + (bb * 2 + (c >> 1)) * 16 + mt * 8 + (c & 1) * 4; cc = "0" if kk == 0 else f"v[{d}:{d+3}]"
                            va = 192 + bb * 32 + (mt * 4 + kk) * 4; wa = b + (ks * 4 + c) * 4
                            l.append(f"v_mfma_f32_16x16x32_bf16 v[{d}:{d+3}], a[{va}:{va+3}], a[{wa}:{wa+3}], {cc}")
            return l
        for ks in range(4):
            kk = (u & 1) * 4 + ks
            for bb in range(2):
                for cb in range(2):
                    d = 128 + (h & 1) * 64 + (bb * 2 + cb) * 16; c = "0" if kk == 0 else f"v[{d}:{d+15}]"
                    va = 192 + bb * 32 + kk * 4; wa = b + (ks * 2 + cb) * 4
                    l.append(f"v_mfma_f32_32x32x16_bf16 v[{d}:{d+15}], a[{va}:{va+3}], a[{wa}:{wa+3}], {c}")
        return l
    def cvts(h): return [f"v_cvt_pk_bf16_f32 v{32+(h%3)*32+k}, v{128+(h&1)*64+2*k}, v{129+(h&1)*64+2*k}" for k in range(32)]
    def swp(h, k0, n): return [f"v_permlane16_swap_b32 v{32+(h%3)*32+k}, v{34+(h%3)*32+k}" for k in range(k0, k0 + n) if not k & 2] if m16 else []
    def om(h, blk, j):
        d = 128 + blk * 16; c = "0" if (h == 0 and j == 0) else f"a[{d}:{d+15}]"
        w = 32 + (h % 3) * 32 + (blk * 2 + j) * 4; p = 64 + (h & 3) * 16 + ((blk >> 1) * 2 + j) * 4
        return f"v_mfma_f32_32x32x16_bf16 a[{d}:{d+15}], v[{w}:{w+3}], a[{p}:{p+3}], {c}"
    outsched = {7: [0], 8: [1], 9: [2], 10: [3], 11: [4], 13: [5], 15: [6]}
    psched = {5: [0, 1], 6: [2], 7: [3], 8: [4], 9: [5], 10: [6], 11: [7]}
    if early == 1:
        pollu = 3; outsched = {6: [0], 7: [1], 8: [2], 9: [3], 11: [4], 13: [5], 15: [6]}; psched = {4: [0, 1], 5: [2], 6: [3], 7: [4], 8: [5], 10: [6], 12: [7]}
    if early == 2:
        pollu = 2; outsched = {5: [0], 6: [1], 7: [2], 9: [3], 11: [4], 13: [5], 15: [6]}; psched = {3: [0, 1], 4: [2], 6: [3], 8: [4], 10: [5], 12: [6], 13: [7]}
    if pollu == 5: psched = {6: [0, 1, 2], 7: [3], 8: [4], 9: [5], 10: [6], 11: [7]}
    for u in range(16):
        A("s_waitcnt lgkmcnt(0)")
        if u == 1 and not wflag:
            g.vmwait("P"); A("s_barrier\ns_cmp_lg_u32 s6, 0\ns_cbranch_scc1 L_nosig\ns_mov_b64 exec, 1")
            A(f"buffer_store_dword v5, v1, {WS}, s57 offen sc1\ns_mov_b64 exec, -1\nL_nosig:"); stamp(4)
        if u == pollu: A(f"buffer_load_dword v6, v7, {WS}, s58 offen sc1"); g.vmop("poll")
        if u == pollu + 1:
            g.vmwait("poll"); A("s_mov_b32 s45, 0\nL_poll:\nv_cmp_ne_u32 vcc, v5, v6\ns_nop 4\ns_cbranch_vccz L_polled\ns_add_u32 s45, s45, 1\ns_cmp_ge_u32 s45, 0x200000\ns_cbranch_scc1 L_polled")
            A(f"buffer_load_dword v6, v7, {WS}, s58 offen sc1\ns_waitcnt vmcnt(0)\ns_branch L_poll\nL_polled:"); stamp(5)
        rd = []
        if u < 15: g.vmwait(f"w{u+1}"); rd = wo_reads(u + 1)
        if sp >= 0 and 1 <= u + 16 - sp + 1 <= 7: stamp(u + 16 - sp + 1, True)
        dm = []
        for h in psched.get(u, []): dm += p_loads(h)
        if u + LB < 16: dm += wo_dmas(u + LB)
        if pfB2 <= u + 16 < pfB2 + stag2 * st2 and (u + 16 - pfB2) % st2 == 0: dm = dm + [cpf(1, (u + 16 - pfB2) // st2)]
        cv = cvts(u // 2 - 1)[(u & 1) * 16:(u & 1) * 16 + 16] + swp(u // 2 - 1, (u & 1) * 16, 16) if u >= 2 else []
        mf = vw_mfma(u)
        for h in outsched.get(u, []):
            o = [om(h, blk, j) for j in range(2) for blk in range(4)]
            def w(h=h, m=o[0]): g.vmwait(f"p{h}"); A(m)
            mf = mf + [w] + o[1:]
        if u == 15:
            dm = ["v_add_u32 v8, s48, v31", "v_and_b32 v1, 31, v0\nv_lshrrev_b32 v9, 5, v0\nv_lshlrev_b32 v9, 4, v9\nv_lshl_add_u32 v9, v1, 12, v9",
                  "s_lshl_b32 s7, s44, 1\ns_add_u32 s7, s7, s81\ns_lshl_b32 s7, s7, 17\ns_lshl_b32 s45, s5, 11\ns_add_u32 s7, s7, s45\ns_lshl_b32 s45, s43, 7\ns_add_u32 s7, s7, s45\ns_and_b32 s45, s6, 1\ns_lshl_b32 s45, s45, 6\ns_add_u32 s7, s7, s45"]
            dm += [f"v_xor_b32 v{9+k}, {hex(k*8192)}, v8" for k in (1, 2, 3)]
        if u == 0 and wflag:
            def fl(m=mf[wflag]):
                A(m); g.vmwait("P"); A(f"s_mov_b64 exec, 1\nbuffer_store_dword v5, v1, {WS}, s57 offen sc1\ns_mov_b64 exec, -1"); g.vmop("flag"); stamp(4)
            mf[wflag] = fl
        sched(g, mf, [(dm, 0, min(DB, len(mf))), (rd, 0, R2 if m16 else F - 1), (cv, (4 if m16 else 5) if u % 2 == 0 else 0, C2 if m16 else 14)])
    A("s_nop 3"); g.vmwait("p7")
    cv = cvts(7); wr = []
    boff = {1: 0, 2: 4096, 3: 32768}
    for n, blk in enumerate((1, 2, 3, 0)):
        run(cv[blk * 8:blk * 8 + 8]); A("s_nop 1" if m16 else "s_nop 0"); run(swp(7, blk * 8, 8) + (["s_nop 1"] if m16 else [])); run(wr); A(om(7, blk, 0)); A(om(7, blk, 1))
        wr = []
        if n >= 1:
            pb = (1, 2, 3, 0)[n - 1]
            wr = [f"ds_write_b128 v8, a[{128+pb*16+4*a}:{131+pb*16+4*a}] offset:{boff[pb]+a*1024}" for a in range(4)]
    stamp(6)
    A("s_nop 1"); run(wr); A("s_nop 7")
    for k in range(16): A(f"v_accvgpr_read_b32 v{32+k}, a{128+k}")
    A("s_waitcnt lgkmcnt(0)\ns_barrier")
    for a in range(4):
        for k in (1, 2, 3): A(f"ds_read_b128 v[{32+16*k+4*a}:{35+16*k+4*a}], v{9+k} offset:{boff[k]+a*1024}")
    for a in range(4):
        A(f"s_waitcnt lgkmcnt({9-3*a})")
        for q in range(4 * a, 4 * a + 4): A(f"v_add_f32 v{32+q}, v{32+q}, v{48+q}\nv_add_f32 v{64+q}, v{64+q}, v{80+q}")
        for q in range(4 * a, 4 * a + 4): A(f"v_add_f32 v{32+q}, v{32+q}, v{64+q}")
        for q in range(2): A(f"v_cvt_pk_bf16_f32 v{96+2*a+q}, v{32+4*a+2*q}, v{33+4*a+2*q}")
        if a & 1:
            r = 96 + 2 * (a - 1)
            A(f"s_nop 1\nv_permlane32_swap_b32 v{r}, v{r+2}\nv_permlane32_swap_b32 v{r+1}, v{r+3}\nbuffer_store_dwordx4 v[{r}:{r+3}], v9, {OUT}, s7 offen offset:{16*(a-1)}")
    if stamps:
        A("s_waitcnt vmcnt(0)"); stamp(7); A(f"s_waitcnt lgkmcnt(0)\ns_sub_u32 s76, s78, s76\ns_sub_u32 s78, s{60+2*c1}, s{60+2*c0}\ns_mov_b32 s77, 0\ns_mov_b32 s79, 0\ns_cmp_lg_u32 s6, 0\ns_cbranch_scc1 L_end\ns_lshl_b32 s3, s2, 7\ns_add_u32 s3, s3, 0x8000000\nv_mov_b32 v1, 0\ns_mov_b64 exec, 1")
        for k in range(5):
            for q in range(4): A(f"v_mov_b32 v{4+q}, s{60+4*k+q}")
            A(f"buffer_store_dwordx4 v[4:7], v1, {WS}, s3 offen offset:{16*k}\ns_nop 1")
    A("L_end:\ns_endpgm")
    A('.section .rodata,"a"\n.p2align 6\n.amdhsa_kernel %s_kernel\n  .amdhsa_next_free_vgpr 512\n  .amdhsa_next_free_sgpr 96\n  .amdhsa_accum_offset 256\n  .amdhsa_group_segment_fixed_size 0\n  .amdhsa_kernarg_size 104\n  .amdhsa_user_sgpr_count 2\n  .amdhsa_user_sgpr_kernarg_segment_ptr 1\n  .amdhsa_system_sgpr_workgroup_id_x 1\n.end_amdhsa_kernel' % NAME)
    T = "\n".join(g.L).split("\n")
    if "m" in kill: T = [t for t in T if not t.startswith("v_mfma")]
    if "d" in kill: T = [t for t in T if not t.rstrip().endswith("lds")]
    if "r" in kill: T = [t for t in T if not t.startswith("ds_read_b64_tr") and not t.startswith("ds_read_b128 a")]
    open(fn, "w").write("\n".join(T) + "\n")
if __name__ == "__main__":
    kw = {}
    for a in sys.argv[2:]:
        k, v = a.split("="); kw[k] = int(v) if v.lstrip("-").isdigit() else v
    gen(sys.argv[1], **kw)
```
